```python
import torch

def _softmax(x, axis=-1):
    return torch.softmax(x, dim=axis)

def _gelu(x):
    return torch.nn.functional.gelu(x, approximate='tanh')

def _silu(x):
    return torch.nn.functional.silu(x)

def _sigmoid(x):
    return torch.sigmoid(x)

def _layernorm(x, axis=-1, eps=1e-05):
    m = x.mean(dim=axis, keepdim=True)
    v = x.var(dim=axis, keepdim=True, unbiased=False)
    return (x - m) / torch.sqrt(v + eps)

def _scatter_add(tgt, idx, src, axis=0):
    return tgt.clone().index_add_(axis, idx, src)

def _segment_sum(src, seg, n):
    out = torch.zeros((n,) + src.shape[1:], dtype=src.dtype)
    return out.index_add_(0, seg, src)

def _pad(x, pw):
    flat = tuple((v for pair in reversed(pw) for v in pair))
    return torch.nn.functional.pad(x, flat)
kernel_name = 'standalone__factorization_afm__recsys'

def setup_inputs():

    _w = lambda a: (lambda t: t.to(torch.bfloat16) if t.is_floating_point() else t)(torch.as_tensor(a))
    B, F, D, V = (4096, 26, 64, min(1000, 100000))
    A = D
    ii, jj = tuple(torch.triu_indices(F, F, 1).unbind(0))
    return {'idx': _w((lambda lo, hi, *s: torch.randint(lo, hi, s))(0, V, B, F).to(torch.int64)), 'table': _w((lambda *s: torch.randn(*s, dtype=torch.bfloat16) * 1.6)(V, D)), 'ii': _w(ii.to(torch.int64)), 'jj': _w(jj.to(torch.int64)), 'W': _w((lambda *s: torch.randn(*s, dtype=torch.bfloat16) * 0.4)(D, A) * (1.0 / D ** 0.5)), 'b': _w((lambda *s: torch.randn(*s, dtype=torch.bfloat16) * 0.4)(A)), 'h': _w((lambda *s: torch.randn(*s, dtype=torch.bfloat16) * 0.4)(A)), 'p': _w((lambda *s: torch.randn(*s, dtype=torch.bfloat16) * 1.6)(D))}

def reference(idx, table, ii, jj, W, b, h, p):
    emb = table[idx]
    ei = emb[:, ii, :].clone()
    ej = emb[:, jj, :].clone()
    pair = ei * ej
    hid = pair @ W + b
    hid = 0.5 * (hid + torch.abs(hid))
    e = hid @ h
    alpha = _softmax(e, axis=-1)
    pooled = torch.einsum('bp,bpd->bd', alpha, pair)
    return pooled @ p
```

```python
import re


def regs(spec):
    m = re.fullmatch(r"v\[(\d+):(\d+)\]", spec)
    if m:
        return list(range(int(m.group(1)), int(m.group(2)) + 1))
    m = re.fullmatch(r"v(\d+)", spec)
    return [int(m.group(1))]


def vr(a, n=1):
    return f"v{a}" if n == 1 else f"v[{a}:{a + n - 1}]"


class I:
    def __init__(self, text, kind, rd=(), wr=(), srcc=()):
        self.text, self.kind = text, kind
        self.rd, self.wr, self.srcc = set(rd), set(wr), set(srcc)
        self.wait = None
        self.fixed = None

    def __repr__(self):
        return self.text


def auto_waits(seq_pre, body, seq_post, nsim=3):
    for ins in list(seq_pre) + list(body) + list(seq_post):
        ins.wait = ins.fixed
    changed = True
    while changed:
        changed = False
        for trips in range(1, nsim + 1):
            seq = list(seq_pre) + list(body) * trips + list(seq_post)
            issued = 0
            done = 0
            pend = {}
            for ins in seq:
                if ins.wait is not None:
                    done = max(done, issued - ins.wait)
                need = -1
                touched = ins.rd | ins.wr
                for r in touched:
                    if r in pend and pend[r] >= done:
                        if ins.kind == "dsr" and r in ins.wr and r not in ins.rd:
                            continue
                        need = max(need, pend[r])
                if need >= 0:
                    n = min(15, issued - need - 1)
                    if ins.wait is None or n < ins.wait:
                        ins.wait = n
                        changed = True
                    done = max(done, issued - ins.wait)
                if ins.kind in ("dsr", "dsw"):
                    if ins.kind == "dsr":
                        for r in ins.wr:
                            pend[r] = issued
                    issued += 1


def check_hazards(seq, name=""):
    flat = []
    for ins in seq:
        if ins.wait is not None:
            flat.append(I(f"s_waitcnt lgkmcnt({ins.wait})", "wait"))
        flat.append(ins)
    errs = []
    VAL = ("valu", "trans", "swap")
    for i, a in enumerate(flat):
        for j in range(i + 1, min(len(flat), i + 24)):
            b = flat[j]
            dist = j - i - 1
            if b.text.startswith("s_nop"):
                pass
            dist = 0
            for k in range(i + 1, j):
                t = flat[k].text
                m = re.match(r"s_nop (\d+)", t)
                dist += (int(m.group(1)) + 1) if m else 1
            need = 0
            if a.kind in VAL and b.kind in ("mfma8", "mfma4") and a.wr & (b.rd | b.srcc):
                need = 2
            if a.kind in ("mfma8", "mfma4"):
                p = 12 if a.kind == "mfma8" else 8
                if b.kind in VAL + ("dsr", "dsw") and a.wr & (b.rd | b.wr):
                    need = p
                if b.kind in ("mfma8", "mfma4"):
                    if a.wr & b.rd:
                        need = p
                    if a.wr & b.srcc and not (a.wr == b.srcc and a.kind == b.kind):
                        need = 10 if a.kind == "mfma8" else 6
                if b.kind in VAL and a.srcc & b.wr and not (a.wr & b.wr):
                    need = max(need, 7 if a.kind == "mfma8" else 3)
            if a.kind in VAL and b.kind == "swap" and a.wr & (b.rd | b.wr):
                need = max(need, 2)
            if a.kind in VAL and "dpp" in b.text and a.wr & b.rd:
                need = max(need, 2)
            if a.kind == "trans" and b.kind in VAL and a.wr & b.rd:
                need = max(need, 1)
            if need > dist:
                errs.append(f"{name}: [{a.text}] -> [{b.text}] needs {need} has {dist}")
    return errs


def emit(seq):
    out = []
    for ins in seq:
        if ins.wait is not None:
            out.append(f"  s_waitcnt lgkmcnt({ins.wait})")
        out.append(ins.text if ins.text.endswith(":") else "  " + ins.text)
    return out
```

```python
F=26
def cherries():
    ch=[]
    used=set()
    k4=[(m,m+1) for m in range(0,12,2)]
    for m in range(13):
        for m2 in range(m+1,13):
            if (m,m2) in k4:
                a,b,c,d=2*m,2*m+1,2*m2,2*m2+1
                ch.append((a,b,c))
                ch.append((d,a,b))
                ch.append((c,b,d))
            else:
                ch.append((2*m,2*m2,2*m2+1))
                ch.append((2*m+1,2*m2,2*m2+1))
    ch.append((24,25,None))
    return ch
def check(ch):
    seen=set()
    for H,A,B in ch:
        for x in (A,B):
            if x is None or H is None: continue
            e=(min(H,x),max(H,x)); assert H!=x and e not in seen,(H,x); seen.add(e)
    assert len(seen)==325,len(seen)
if __name__=="__main__":
    ch=cherries(); check(ch); print(len(ch))
```

```python
import sys, struct
from asmkit import I, vr, auto_waits, check_hazards, emit
import sched

KNAME = "standalone__factorization_afm__recsys_kernel"

FS = 2176
PS = 272
ZOFF = 56576
EOK = ZOFF + 64
WOK = ZOFF + 128
POK = ZOFF + 132
TRASH = ZOFF + 136
HS = 56832
BS = 57088
U16 = 57344
P16 = 57472
WOFF = 57600
WRS = 192
TOFF = 69888
SLOT = 768
NSLOT = 13
TW = SLOT * NSLOT
LDS_TOTAL = TOFF + 8 * TW
SCR = WOFF

vW, vBIAS, vH, vACC = 128, 160, 192, 224
vBP, vLINA, vHELD, vSTR, vD, vIDX = 112, 96, 80, 64, 60, 59
vEA, vEB, vE, vS = 56, 57, 54, 55
vaH, vaSA, vaSB, vT, vZ, vT0 = 50, 51, 52, 53, 49, 47
vEW = 48

LOG2E = 1.4426950408889634


def f32bits(x):
    return struct.unpack("<I", struct.pack("<f", x))[0]


def build_tables():
    ch = sched.cherries()
    sched.check(ch)
    ch = ch + [(None, None, None)]
    its = [(ch[2 * i], ch[2 * i + 1]) for i in range(82)]
    counts = [11, 11, 10, 10, 10, 10, 10, 10]
    per = []
    pos = 0
    order = list(range(81))
    for w in range(8):
        n = counts[w] - (1 if w == 1 else 0)
        lst = [its[order[pos + k]] for k in range(n)]
        pos += n
        if w == 1:
            lst.append(its[81])
        per.append(lst)
    assert pos == 81
    data = []
    for w in range(8):
        for sg in range(2):
            ent = []
            for it in range(12):
                if it < len(per[w]):
                    H, A, B = per[w][it][sg]
                else:
                    H, A, B = per[w][-1][sg]
                H = 0 if H is None else H
                A = 1 if A is None else A
                B = 1 if B is None else B
                ent += [H * FS, A * FS, B * FS]
            ent += [0] * (40 - len(ent))
            data += ent
    return counts, data


def mfma(mu, s):
    acc = vACC + 16 * mu
    a = vW + (mu * 4 + s) * 4
    b = vBP + 4 * s
    c = (vBIAS + 16 * mu) if s == 0 else acc
    return I(f"v_mfma_f32_32x32x16_f16 {vr(acc,16)}, {vr(a,4)}, {vr(b,4)}, {vr(c,16)}", "mfma8",
             rd=list(range(a, a + 4)) + list(range(b, b + 4)), wr=range(acc, acc + 16), srcc=range(c, c + 16))


def smf(tau, part):
    a = vLINA + (tau * 2 + part) * 4
    b = vBP + 8 * part
    return I(f"v_smfmac_f32_16x16x64_f16 {vr(vD,4)}, {vr(a,4)}, {vr(b,8)}, v{vIDX}", "mfma4",
             rd=list(range(a, a + 4)) + list(range(b, b + 8)) + [vIDX], wr=range(vD, vD + 4), srcc=range(vD, vD + 4))


def prod(s, i):
    k = 4 * s + i
    return I(f"v_pk_mul_f16 v{vBP+k}, v{vHELD+k}, v{vSTR+k}", "valu", rd=[vHELD + k, vSTR + k], wr=[vBP + k])


def fabs(e, mu, r, init=None):
    x = vACC + 16 * mu + r
    h = vH + 16 * mu + r
    src = e if init is None else init
    return I(f"v_fma_f32 v{e}, |v{x}|, v{h}, v{src}", "valu", rd=[x, h, src], wr=[e])


def ldc(dst, addr, c):
    return I(f"ds_read_b128 {vr(dst+4*c,4)}, v{addr} offset:{c*PS}", "dsr", rd=[addr], wr=range(dst + 4 * c, dst + 4 * c + 4))


def tile(tau):
    eprev = vEB if tau == 0 else vEA
    ecur = vEA if tau == 0 else vEB
    dinit = vD + (0 if tau == 0 else 3)
    P = lambda s, idx: [prod(s, i) for i in idx]
    F1 = [fabs(eprev, 1, r) for r in range(16)]
    F0 = [fabs(ecur, 0, r, init=(dinit if r == 0 else None)) for r in range(16)]

    def after(c):
        if tau == 0:
            return [ldc(vSTR, vaSB, c)]
        return [ldc(vHELD, vaH, c), ldc(vSTR, vaSA, c)]

    def after0():
        if tau == 0:
            return [ldc(vHELD, vaH, 0), ldc(vSTR, vaSA, 0)]
        return [ldc(vSTR, vaSB, 0)]

    L = []
    if tau == 0:
        L.append(I(f"ds_read2st64_b32 {vr(vaH,2)}, v{vT} offset0:6 offset1:7", "dsr", rd=[vT], wr=[vaH, vaSA]))
    L.append(mfma(0, 0))
    L += P(1, [2, 3]) + after(1) + P(2, [0, 1, 2, 3]) + after(2)
    L.append(mfma(0, 1))
    L += P(3, [0, 1, 2, 3]) + after(3)
    if tau == 0:
        L.append(I(f"ds_read_b32 v{vaSB}, v{vT} offset:{8*256}", "dsr", rd=[vT], wr=[vaSB]))
    L += F1[0:2]
    L.append(smf(tau, 0))
    L += F1[2:4]
    if tau == 1:
        L.append(I(f"v_add_u32 v{vT}, {SLOT}, v{vT}", "valu", rd=[vT], wr=[vT]))
    L.append(mfma(0, 2))
    L += F1[4:10]
    L.append(mfma(0, 3))
    L += F1[10:14]
    L.append(smf(tau, 1))
    L += F1[14:16]
    L.append(mfma(1, 0))
    L += P(0, [0, 1, 2, 3]) + after0()
    if tau == 0:
        L.append(I(f"v_permlane32_swap_b32 v{vEA}, v{vEB}", "swap", rd=[vEA, vEB], wr=[vEA, vEB]))
        L.append(I(f"v_add_f32 v{vE}, v{vEA}, v{vEB}", "valu", rd=[vEA, vEB], wr=[vE]))
    L.append(mfma(1, 1))
    if tau == 0:
        L.append(I(f"ds_write2st64_b32 v{vT}, v{vE}, v{vS} offset0:0 offset1:1", "dsw", rd=[vT, vE, vS]))
    L += P(1, [0, 1]) + F0[0:4]
    L.append(mfma(1, 2))
    if tau == 1:
        L.append(I(f"v_add_f32 v{vS}, v{vD+1}, v{vD+2}", "valu", rd=[vD + 1, vD + 2], wr=[vS]))
        L.append(I(f"ds_read_b128 {vr(vD,4)}, v{vZ}", "dsr", rd=[vZ], wr=range(vD, vD + 4)))
    L += F0[4:10]
    L.append(mfma(1, 3))
    L += F0[10:16]
    return L


def loop_parts():
    pre = []
    for c in range(4):
        pre.append(ldc(vHELD, vaH, c))
    for c in range(4):
        pre.append(ldc(vSTR, vaSA, c))
    pre.append(I(f"ds_read_b128 {vr(vD,4)}, v{vZ}", "dsr", rd=[vZ], wr=range(vD, vD + 4)))
    pre += [prod(0, i) for i in range(4)]
    pre.append(ldc(vSTR, vaSB, 0))
    pre += [prod(1, 0), prod(1, 1)]
    body = tile(0) + tile(1)
    ctl = [I("s_sub_u32 s60, s60, 1", "salu"), I("s_cmp_lg_u32 s60, 0", "salu")]
    k = max(i for i, x in enumerate(body) if x.kind == "mfma8")
    body = body[:k] + ctl + body[k:]
    br = I("s_cbranch_scc1 L_loop", "salu")
    post = [fabs(vEB, 1, r) for r in range(16)]
    post = [I("s_nop 5", "salu")] + post + [I("s_nop 1", "salu"),
            I(f"v_permlane32_swap_b32 v{vEA}, v{vEB}", "swap", rd=[vEA, vEB], wr=[vEA, vEB]),
            I("s_nop 0", "salu"),
            I(f"v_add_f32 v{vE}, v{vEA}, v{vEB}", "valu", rd=[vEA, vEB], wr=[vE]),
            I(f"ds_write2st64_b32 v{vT}, v{vE}, v{vS} offset0:0 offset1:1", "dsw", rd=[vT, vE, vS])]
    auto_waits(pre, body + [br], post)
    errs = []
    for trips in (1, 2, 3):
        errs += check_hazards(pre + (body + [br]) * trips + post, f"trips{trips}")
    errs = sorted(set(errs))
    if errs:
        print("\n".join(errs), file=sys.stderr)
        raise SystemExit("hazards")
    return pre, body + [br], post


def gen():
    counts, tbl = build_tables()
    o = []
    A = o.append
    with open("standalone__factorization_afm__recsys.s.ref") as f:
        for line in f:
            if line.startswith("; @launch"):
                break
            if line.startswith("; Override") or line.startswith("; grid="):
                continue
            A(line.rstrip())
    A(f"; @launch grid=(256,1,1) block=(512,1,1) lds={LDS_TOTAL}")
    A('.amdgcn_target "amdgcn-amd-amdhsa--gfx950"')
    A(".text")
    A(f".globl {KNAME}")
    A(".p2align 8")
    A(f".type {KNAME},@function")
    A(f"{KNAME}:")
    T = lambda s: [A("  " + l.strip()) if l.strip() and not l.strip().endswith(":") else A(l.strip()) for l in s.strip("\n").split("\n")]
    T(f"""
s_cmp_ge_u32 s2, 256
s_cbranch_scc1 L_end
s_load_dwordx2 s[24:25], s[0:1], 0
s_load_dwordx2 s[28:29], s[0:1], 8
s_load_dwordx8 s[8:15], s[0:1], 32
s_load_dwordx2 s[48:49], s[0:1], 64
s_getpc_b64 s[22:23]
L_pc:
v_and_b32 v1, 63, v0
v_lshrrev_b32 v2, 6, v0
v_and_b32 v3, 15, v0
v_lshl_add_u32 v3, v2, 4, v3
v_lshlrev_b32 v3, 7, v3
v_min_u32 v3, L_code_end-L_pc-4, v3
v_readfirstlane_b32 s52, v2
global_load_dword v4, v3, s[22:23]
v_bfe_u32 v5, v0, 4, 1
v_lshl_add_u32 v5, v2, 1, v5
v_mul_u32_u24 v5, 80, v5
v_add_u32 v5, L_tbl-L_pc, v5
global_load_dwordx4 v[72:75], v5, s[22:23]
global_load_dwordx4 v[76:79], v5, s[22:23] offset:16
global_load_dwordx4 v[80:83], v5, s[22:23] offset:32
global_load_dwordx4 v[84:87], v5, s[22:23] offset:48
global_load_dwordx4 v[88:91], v5, s[22:23] offset:64
s_lshr_b32 s53, s52, 1
s_and_b32 s54, s52, 1
s_mul_i32 s55, s53, 28
s_cmp_eq_u32 s53, 3
s_cselect_b32 s56, 4, 0
s_sub_u32 s55, s55, s56
s_mul_i32 s56, s2, 1664
s_add_u32 s55, s55, s56
s_mul_i32 s56, s54, 832
s_add_u32 s56, s55, s56
s_mov_b32 s26, 425984
s_mov_b32 s27, 0x20000
s_mov_b32 s30, 128000
s_mov_b32 s31, 0x20000
s_mov_b32 s50, 8192
s_mov_b32 s51, 0x20000
v_lshrrev_b32 v6, 3, v1
v_mul_u32_u24 v92, 104, v6
v_and_b32 v7, 7, v1
v_lshlrev_b32 v93, 4, v7
v_lshlrev_b32 v94, 4, v0
v_lshlrev_b32 v95, 1, v1
s_waitcnt lgkmcnt(0)
buffer_load_dwordx4 v[8:11], v92, s[24:27], s56 offen
buffer_load_dwordx3 v[12:14], v92, s[24:27], s56 offen offset:16
global_load_dwordx4 v[44:47], v94, s[8:9]
global_load_dwordx4 v[64:67], v93, s[12:13]
global_load_ushort v68, v95, s[10:11]
global_load_ushort v69, v95, s[12:13]
global_load_ushort v70, v95, s[14:15]
""")
    T(f"""
s_mul_i32 s57, s53, {FS}
s_lshl_b32 s58, s54, 7
s_add_u32 s57, s57, s58
v_mul_u32_u24 v{vEW}, {PS}, v7
v_lshl_add_u32 v{vEW}, v6, 4, v{vEW}
v_add_u32 v{vEW}, s57, v{vEW}
v_lshrrev_b32 v96, 3, v0
v_mul_u32_u24 v96, {WRS}, v96
v_add_u32 v96, v96, v93
v_add_u32 v96, {WOFF}, v96
v_lshlrev_b32 v97, 2, v1
v_mov_b32 v98, 0
ds_write_b32 v97, v98 offset:{ZOFF}
s_waitcnt vmcnt(5)
""")
    for t in range(7):
        T(f"v_lshl_add_u32 v{8+t}, v{8+t}, 7, v93")
    for t in range(7):
        T(f"buffer_load_dwordx4 v[{16+4*t}:{19+4*t}], v{8+t}, s[28:31], 0 offen")
    T("s_waitcnt vmcnt(7)")
    for i in range(4):
        T(f"v_lshlrev_b32 v{224+2*i}, 16, v{44+i}\nv_and_b32 v{225+2*i}, 0xffff0000, v{44+i}")
    for i in range(4):
        T(f"v_lshlrev_b32 v{232+2*i}, 16, v{64+i}\nv_and_b32 v{233+2*i}, 0xffff0000, v{64+i}")
    for i in range(4):
        T(f"v_cvt_pk_f16_f32 v{240+i}, v{224+2*i}, v{225+2*i}")
    T("v_mul_f32 v244, v224, v232")
    T("ds_write_b128 v96, v[240:243]")
    for i in range(1, 8):
        T(f"v_fma_f32 v244, v{224+i}, v{232+i}, v244")
    T(f"""
v_lshlrev_b32 v68, 16, v68
v_lshlrev_b32 v69, 16, v69
v_lshlrev_b32 v70, 16, v70
v_add_f32_dpp v244, v244, v244 quad_perm:[1,0,3,2] row_mask:0xf bank_mask:0xf
v_mul_f32 v69, {f32bits(0.5*LOG2E):#x}, v69
v_cvt_f16_f32 v71, v70
v_add_f32_dpp v244, v244, v244 quad_perm:[2,3,0,1] row_mask:0xf bank_mask:0xf
ds_write_b32 v97, v68 offset:{BS}
ds_write_b32 v97, v69 offset:{HS}
v_add_f32_dpp v244, v244, v244 row_half_mirror row_mask:0xf bank_mask:0xf
ds_write_b16 v95, v71 offset:{P16}
v_pk_maximum3_f16 v245, v240, v240, v241 neg_lo:[0,1,0] neg_hi:[0,1,0]
v_mul_f32 v244, {f32bits(0.5*LOG2E):#x}, v244
v_pk_maximum3_f16 v245, v245, v241, v242 neg_lo:[0,1,0] neg_hi:[0,1,0]
v_lshrrev_b32 v99, 3, v0
v_cvt_f16_f32 v244, v244
v_pk_maximum3_f16 v245, v245, v242, v243 neg_lo:[0,1,0] neg_hi:[0,1,0]
v_lshlrev_b32 v99, 1, v99
v_pk_maximum3_f16 v245, v245, v243, v245 neg_lo:[0,1,0] neg_hi:[0,1,0]
ds_write_b16 v99, v244 offset:{U16}
v_max_u16_sdwa v245, v245, v245 dst_sel:DWORD dst_unused:UNUSED_PAD src0_sel:WORD_0 src1_sel:WORD_1
v_and_b32 v71, 0x7fff, v71
s_waitcnt lgkmcnt(0)
s_barrier
""")
    T(f"""
v_mov_b32 v100, 1
v_mov_b32 v101, {TRASH}
v_mov_b32 v102, {WOK}
v_mov_b32 v103, {POK}
v_cmp_le_u32 vcc, 0x1c00, v245
v_lshrrev_b32 v3, 5, v1
v_and_b32 v4, 15, v1
v_cndmask_b32 v102, v101, v102, vcc
v_cmp_le_u32 vcc, 0x2400, v71
v_lshrrev_b32 v5, 2, v4
v_lshl_add_u32 v5, v3, 5, v5
v_cndmask_b32 v103, v101, v103, vcc
ds_write_b32 v102, v100
ds_write_b32 v103, v100
v_mul_u32_u24 v5, {WRS}, v5
v_and_b32 v6, 3, v1
v_lshlrev_b32 v6, 3, v6
v_bfe_u32 v7, v1, 4, 1
v_lshl_add_u32 v6, v7, 5, v6
v_add_u32 v5, v5, v6
v_add_u32 v5, {WOFF}, v5
""")
    for mu in range(2):
        for s in range(4):
            for hf in range(2):
                r = vW + (mu * 4 + s) * 4 + 2 * hf
                T(f"ds_read_b64_tr_b16 v[{r}:{r+1}], v5 offset:{(8*s+4*hf)*WRS + mu*64}")
    T("v_lshlrev_b32 v6, 4, v3")
    for name, base, reg in (("b", BS, vBIAS), ("h", HS, vH)):
        for mu in range(2):
            for rg in range(4):
                r = reg + mu * 16 + 4 * rg
                T(f"ds_read_b128 v[{r}:{r+3}], v6 offset:{base + (32*mu+8*rg)*4}")
    def m64(s, m16):
        v = m16 | (m16 << 16)
        T(f"s_mov_b32 s{s}, {v:#x}\ns_mov_b32 s{s+1}, {v:#x}")
    m64(62, 0x9999)
    m64(64, 0xDD44)
    m64(66, 0x0107); m64(68, 0x1070); m64(70, 0x0E08); m64(72, 0xE080)
    T(f"""
v_lshlrev_b32 v8, 6, v7
v_lshl_add_u32 v8, v3, 4, v8
v_mov_b32 v9, {P16}
v_mov_b32 v10, {U16}
v_cndmask_b32 v9, v9, v10, s[62:63]
v_add_u32 v8, v8, v9
v_add_u32 v9, 4, v8
v_cndmask_b32 v8, v8, v9, s[64:65]
ds_read2_b32 v[224:225], v8 offset0:0 offset1:2
ds_read2_b32 v[226:227], v8 offset0:8 offset1:10
v_mov_b32 v9, 0x44444444
v_mov_b32 v10, 0xeeeeeeee
v_cndmask_b32 v{vIDX}, v9, v10, s[64:65]
""")
    T(f"""
v_mul_u32_u24 v11, 1088, v3
v_lshl_add_u32 v11, v4, 4, v11
s_mul_i32 s57, s52, {TW}
s_add_u32 s57, s57, {TOFF}
v_lshlrev_b32 v{vT0}, 2, v1
v_add_u32 v{vT0}, s57, v{vT0}
v_mov_b32 v{vT}, v{vT0}
v_mov_b32 v{vZ}, {ZOFF}
""")
    sd = lambda d, src, w: f"v_add_u32_sdwa v{d}, v11, v{src} dst_sel:DWORD dst_unused:UNUSED_PAD src0_sel:DWORD src1_sel:WORD_{w}"
    T(sd(vaH, 72, 0)); T(sd(vaSA, 72, 1)); T(sd(vaSB, 73, 0))
    T(sd(228, 73, 1))
    T(f"ds_write_b32 v{vT0}, v228 offset:{(3+3)*256}")
    for e in range(4, 36, 2):
        a, b = 228 + (e % 8), 229 + (e % 8)
        T(sd(a, 72 + e // 2, 0)); T(sd(b, 72 + e // 2, 1))
        T(f"ds_write2st64_b32 v{vT0}, v{a}, v{b} offset0:{e+3} offset1:{e+4}")
    T("s_waitcnt lgkmcnt(0)")
    idx = 0
    for tau in range(2):
        for part in range(2):
            for rho in range(4):
                msk = 66 + 2 * (tau * 2 + (rho >> 1))
                T(f"v_cndmask_b32 v{vLINA+(tau*2+part)*4+rho}, 0, v{224+part*2+(rho&1)}, s[{msk}:{msk+1}]")
    for t in range(7):
        g = 16 + 4 * t
        if t == 6:
            T("s_cmp_ge_u32 s53, 2\ns_cbranch_scc1 L_skip6")
        T(f"s_waitcnt vmcnt({6-t})")
        for i in range(4):
            T(f"v_lshlrev_b32 v{232+2*i}, 16, v{g+i}\nv_and_b32 v{233+2*i}, 0xffff0000, v{g+i}")
        for i in range(4):
            T(f"v_cvt_pk_f16_f32 v{g+i}, v{232+2*i}, v{233+2*i}")
        T(f"ds_write_b128 v{vEW}, v[{g}:{g+3}] offset:{t*4*FS}")
        if t == 1:
            T("v_pk_maximum3_f16 v245, v16, v16, v17 neg_lo:[0,1,0] neg_hi:[0,1,0]")
            for k in range(17, 23):
                T(f"v_pk_maximum3_f16 v245, v245, v{k}, v{k+1} neg_lo:[0,1,0] neg_hi:[0,1,0]")
            T("v_pk_maximum3_f16 v245, v245, v23, v245 neg_lo:[0,1,0] neg_hi:[0,1,0]")
            T(f"""
v_lshrrev_b32 v246, 3, v1
v_lshlrev_b32 v246, 2, v246
v_max_u16_sdwa v245, v245, v245 dst_sel:DWORD dst_unused:UNUSED_PAD src0_sel:WORD_0 src1_sel:WORD_1
s_lshl_b32 s57, s54, 5
s_add_u32 s57, s57, {EOK}
v_add_u32 v246, s57, v246
v_cmp_le_u32 vcc, 0x2800, v245
s_nop 1
v_cndmask_b32 v246, v101, v246, vcc
ds_write_b32 v246, v100
""")
    T("L_skip6:")
    T("s_cmp_lt_u32 s52, 2\ns_cselect_b32 s60, 11, 10\ns_mov_b32 s61, s60")
    T("s_waitcnt vmcnt(0) lgkmcnt(0)\ns_barrier")
    pre, body, post = loop_parts()
    o += emit(pre)
    A(".p2align 6")
    A("L_loop:")
    o += emit(body)
    o += emit(post)
    R = 64
    T("s_waitcnt lgkmcnt(0)")
    for it in range(11):
        T(f"ds_read2st64_b32 v[{R+2*it}:{R+2*it+1}], v{vT0} offset0:{3*(it+1)} offset1:{3*(it+1)+1}")
    T("""
s_cmp_eq_u32 s52, 0
s_cselect_b32 s62, -1, 0
s_cselect_b32 s63, -1, 0
s_cmp_eq_u32 s52, 1
s_cselect_b32 s62, 0xffff, s62
v_mov_b32 v8, 0xff800000
s_waitcnt lgkmcnt(0)
""")
    T(f"v_cndmask_b32 v{R+20}, v8, v{R+20}, s[62:63]\nv_cndmask_b32 v{R+21}, 0, v{R+21}, s[62:63]")
    T(f"v_max3_f32 v9, v{R}, v{R+2}, v{R+4}")
    for k in range(3, 11, 2):
        T(f"v_max3_f32 v9, v9, v{R+2*k}, v{R+2*k+2}")
    for it in range(11):
        T(f"v_sub_f32 v{R+2*it}, v{R+2*it}, v9")
    for it in range(11):
        T(f"v_exp_f32 v{R+2*it}, v{R+2*it}")
    T(f"v_mul_f32 v11, v{R}, v{R+1}\nv_add_f32 v10, v{R}, v{R+2}")
    T(f"v_fma_f32 v11, v{R+2}, v{R+3}, v11")
    for it in range(2, 11):
        T(f"v_add_f32 v10, v10, v{R+2*it}\nv_fma_f32 v11, v{R+2*it}, v{R+2*it+1}, v11")
    T(f"""
v_lshrrev_b32 v12, 4, v0
v_mul_u32_u24 v12, 17, v12
v_and_b32 v13, 15, v0
v_add_lshl_u32 v12, v12, v13, 2
ds_write2st64_b32 v12, v9, v10 offset0:{SCR//256} offset1:{SCR//256+9}
ds_write_b32 v12, v11 offset:{SCR+4608}
v_and_b32 v13, 31, v1
v_mul_u32_u24 v13, 17, v13
v_lshrrev_b32 v14, 5, v1
s_lshl_b32 s57, s52, 1
v_add_u32 v14, s57, v14
v_add_lshl_u32 v13, v13, v14, 2
s_waitcnt lgkmcnt(0)
s_barrier
ds_read2st64_b32 v[16:17], v13 offset0:{SCR//256} offset1:{SCR//256+9}
ds_read_b32 v18, v13 offset:{SCR+4608}
v_lshlrev_b32 v15, 2, v14
ds_read_b32 v19, v15 offset:{EOK}
ds_read_b64 v[20:21], v{vZ} offset:128
s_waitcnt lgkmcnt(0)
v_mov_b32 v22, v16
""")
    assert SCR % 256 == 0
    dpps = ["quad_perm:[1,0,3,2]", "quad_perm:[2,3,0,1]", "row_half_mirror", "row_mirror"]
    for d in dpps:
        T(f"s_nop 1\nv_max_f32_dpp v22, v22, v22 {d} row_mask:0xf bank_mask:0xf")
    T("""
v_mov_b32 v23, v22
s_nop 1
v_permlane16_swap_b32 v22, v23
s_nop 0
v_max_f32 v22, v22, v23
v_sub_f32 v16, v16, v22
v_exp_f32 v16, v16
s_nop 0
v_mul_f32 v17, v17, v16
v_mul_f32 v18, v18, v16
""")
    for d in dpps:
        T(f"s_nop 0\nv_add_f32_dpp v17, v17, v17 {d} row_mask:0xf bank_mask:0xf\nv_add_f32_dpp v18, v18, v18 {d} row_mask:0xf bank_mask:0xf")
    T(f"""
v_mov_b32 v22, v17
v_mov_b32 v23, v18
s_nop 0
v_permlane16_swap_b32 v17, v22
v_permlane16_swap_b32 v18, v23
s_nop 0
v_add_f32 v17, v17, v22
v_add_f32 v18, v18, v23
v_rcp_f32 v17, v17
s_lshl_b32 s57, s2, 4
v_add_u32 v14, s57, v14
v_mul_f32 v18, v18, v17
v_lshlrev_b32 v14, 1, v14
v_cvt_pk_bf16_f32 v18, v18, v18
v_and_b32 v13, 31, v1
v_cmp_eq_u32 vcc, 0, v13
s_and_saveexec_b64 s[58:59], vcc
s_cbranch_execz L_end
buffer_store_short v18, v14, s[48:51], 0 offen
L_end:
s_endpgm
L_code_end:
""")
    A(".p2align 2")
    A(".type L_tbl,@object")
    A("L_tbl:")
    for k in range(0, len(tbl), 20):
        A("  .short " + ", ".join(str(x) for x in tbl[k:k + 20]))
    A('.section .rodata,"a"')
    A(".p2align 6")
    A(f".amdhsa_kernel {KNAME}")
    A("""  .amdhsa_next_free_vgpr 256
  .amdhsa_next_free_sgpr 102
  .amdhsa_accum_offset 256
  .amdhsa_group_segment_fixed_size 0
  .amdhsa_kernarg_size 88
  .amdhsa_user_sgpr_count 2
  .amdhsa_user_sgpr_kernarg_segment_ptr 1
  .amdhsa_system_sgpr_workgroup_id_x 1
.end_amdhsa_kernel""")
    return "\n".join(o) + "\n"


if __name__ == "__main__":
    out = sys.argv[1] if len(sys.argv) > 1 else "standalone__factorization_afm__recsys.s"
    open(out, "w").write(gen())
    print("wrote", out)
```

```python
import sys, struct
from asmkit import I, vr, auto_waits, check_hazards, emit
import sched

KNAME = "standalone__factorization_afm__recsys_kernel"

FS = 2176
PS = 272
ZOFF = 56576
EOK = ZOFF + 64
WOK = ZOFF + 128
POK = ZOFF + 132
TRASH = ZOFF + 136
HS = 56832
BS = 57088
U16 = 57344
P16 = 57472
WOFF = 57600
WRS = 192
TOFF = 69888
SLOT = 768
NSLOT = 13
TW = SLOT * NSLOT
LDS_TOTAL = TOFF + 8 * TW
SCR = WOFF

vW, vBIAS, vH, vACC = 128, 160, 192, 224
vBP, vLINA, vHELD, vSTR, vD, vIDX = 112, 96, 80, 64, 60, 59
vEA, vEB, vE, vS = 56, 57, 54, 55
vaH, vaSA, vaSB, vT, vZ, vT0 = 50, 51, 52, 53, 49, 47
vEW = 48

LOG2E = 1.4426950408889634


def f32bits(x):
    return struct.unpack("<I", struct.pack("<f", x))[0]


def build_tables():
    ch = sched.cherries()
    sched.check(ch)
    ch = ch + [(None, None, None)]
    its = [(ch[2 * i], ch[2 * i + 1]) for i in range(82)]
    counts = [11, 11, 10, 10, 10, 10, 10, 10]
    per = []
    pos = 0
    order = list(range(81))
    for w in range(8):
        n = counts[w] - (1 if w == 1 else 0)
        lst = [its[order[pos + k]] for k in range(n)]
        pos += n
        if w == 1:
            lst.append(its[81])
        per.append(lst)
    assert pos == 81
    data = []
    for w in range(8):
        for sg in range(2):
            ent = []
            for it in range(12):
                if it < len(per[w]):
                    H, A, B = per[w][it][sg]
                else:
                    H, A, B = per[w][-1][sg]
                H = 0 if H is None else H
                A = 1 if A is None else A
                B = 1 if B is None else B
                ent += [H * FS, A * FS, B * FS]
            ent += [0] * (40 - len(ent))
            data += ent
    return counts, data


def mfma(mu, s):
    acc = vACC + 16 * mu
    a = vW + (mu * 4 + s) * 4
    b = vBP + 4 * s
    c = (vBIAS + 16 * mu) if s == 0 else acc
    return I(f"v_mfma_f32_32x32x16_f16 {vr(acc,16)}, {vr(a,4)}, {vr(b,4)}, {vr(c,16)}", "mfma8",
             rd=list(range(a, a + 4)) + list(range(b, b + 4)), wr=range(acc, acc + 16), srcc=range(c, c + 16))


def smf(tau, part):
    a = vLINA + (tau * 2 + part) * 4
    b = vBP + 8 * part
    return I(f"v_smfmac_f32_16x16x64_f16 {vr(vD,4)}, {vr(a,4)}, {vr(b,8)}, v{vIDX}", "mfma4",
             rd=list(range(a, a + 4)) + list(range(b, b + 8)) + [vIDX], wr=range(vD, vD + 4), srcc=range(vD, vD + 4))


def prod(s, i):
    k = 4 * s + i
    return I(f"v_pk_mul_f16 v{vBP+k}, v{vHELD+k}, v{vSTR+k}", "valu", rd=[vHELD + k, vSTR + k], wr=[vBP + k])


def fabs(e, mu, r, init=None):
    x = vACC + 16 * mu + r
    h = vH + 16 * mu + r
    src = e if init is None else init
    return I(f"v_fma_f32 v{e}, |v{x}|, v{h}, v{src}", "valu", rd=[x, h, src], wr=[e])


def ldc(dst, addr, c):
    return I(f"ds_read_b128 {vr(dst+4*c,4)}, v{addr} offset:{c*PS}", "dsr", rd=[addr], wr=range(dst + 4 * c, dst + 4 * c + 4))


def tile(tau):
    eprev = vEB if tau == 0 else vEA
    ecur = vEA if tau == 0 else vEB
    dinit = vD + (0 if tau == 0 else 3)
    P = lambda s, idx: [prod(s, i) for i in idx]
    F1 = [fabs(eprev, 1, r) for r in range(16)]
    F0 = [fabs(ecur, 0, r, init=(dinit if r == 0 else None)) for r in range(16)]

    def after(c):
        if tau == 0:
            return [ldc(vSTR, vaSB, c)]
        return [ldc(vHELD, vaH, c), ldc(vSTR, vaSA, c)]

    def after0():
        if tau == 0:
            return [ldc(vHELD, vaH, 0), ldc(vSTR, vaSA, 0)]
        return [ldc(vSTR, vaSB, 0)]

    L = []
    if tau == 0:
        L.append(I(f"ds_read2st64_b32 {vr(vaH,2)}, v{vT} offset0:6 offset1:7", "dsr", rd=[vT], wr=[vaH, vaSA]))
    L.append(mfma(0, 0))
    L += P(1, [2, 3]) + after(1) + P(2, [0, 1, 2, 3]) + after(2)
    L.append(mfma(0, 1))
    L += P(3, [0, 1, 2, 3]) + after(3)
    if tau == 0:
        L.append(I(f"ds_read_b32 v{vaSB}, v{vT} offset:{8*256}", "dsr", rd=[vT], wr=[vaSB]))
    L += F1[0:2]
    L.append(smf(tau, 0))
    L += F1[2:4]
    if tau == 1:
        L.append(I(f"v_add_u32 v{vT}, {SLOT}, v{vT}", "valu", rd=[vT], wr=[vT]))
    L.append(mfma(0, 2))
    L += F1[4:10]
    L.append(mfma(0, 3))
    L += F1[10:14]
    L.append(smf(tau, 1))
    L += F1[14:16]
    L.append(mfma(1, 0))
    L += P(0, [0, 1, 2, 3]) + after0()
    if tau == 0:
        L.append(I(f"v_permlane32_swap_b32 v{vEA}, v{vEB}", "swap", rd=[vEA, vEB], wr=[vEA, vEB]))
        L.append(I(f"v_add_f32 v{vE}, v{vEA}, v{vEB}", "valu", rd=[vEA, vEB], wr=[vE]))
    L.append(mfma(1, 1))
    if tau == 0:
        L.append(I(f"ds_write2st64_b32 v{vT}, v{vE}, v{vS} offset0:0 offset1:1", "dsw", rd=[vT, vE, vS]))
    L += P(1, [0, 1]) + F0[0:4]
    L.append(mfma(1, 2))
    if tau == 1:
        L.append(I(f"v_add_f32 v{vS}, v{vD+1}, v{vD+2}", "valu", rd=[vD + 1, vD + 2], wr=[vS]))
        L.append(I(f"ds_read_b128 {vr(vD,4)}, v{vZ}", "dsr", rd=[vZ], wr=range(vD, vD + 4)))
    L += F0[4:10]
    L.append(mfma(1, 3))
    L += F0[10:16]
    return L


def loop_parts():
    pre = []
    for c in range(4):
        pre.append(ldc(vHELD, vaH, c))
    for c in range(4):
        pre.append(ldc(vSTR, vaSA, c))
    pre.append(I(f"ds_read_b128 {vr(vD,4)}, v{vZ}", "dsr", rd=[vZ], wr=range(vD, vD + 4)))
    pre += [prod(0, i) for i in range(4)]
    pre.append(ldc(vSTR, vaSB, 0))
    pre += [prod(1, 0), prod(1, 1)]
    body = tile(0) + tile(1)
    ctl = [I("s_sub_u32 s60, s60, 1", "salu"), I("s_cmp_lg_u32 s60, 0", "salu")]
    k = max(i for i, x in enumerate(body) if x.kind == "mfma8")
    body = body[:k] + ctl + body[k:]
    br = I("s_cbranch_scc1 L_loop", "salu")
    post = [fabs(vEB, 1, r) for r in range(16)]
    post = [I("s_nop 5", "salu")] + post + [I("s_nop 1", "salu"),
            I(f"v_permlane32_swap_b32 v{vEA}, v{vEB}", "swap", rd=[vEA, vEB], wr=[vEA, vEB]),
            I("s_nop 0", "salu"),
            I(f"v_add_f32 v{vE}, v{vEA}, v{vEB}", "valu", rd=[vEA, vEB], wr=[vE]),
            I(f"ds_write2st64_b32 v{vT}, v{vE}, v{vS} offset0:0 offset1:1", "dsw", rd=[vT, vE, vS])]
    auto_waits(pre, body + [br], post)
    errs = []
    for trips in (1, 2, 3):
        errs += check_hazards(pre + (body + [br]) * trips + post, f"trips{trips}")
    errs = sorted(set(errs))
    if errs:
        print("\n".join(errs), file=sys.stderr)
        raise SystemExit("hazards")
    return pre, body + [br], post


DIAG = False

def gen():
    counts, tbl = build_tables()
    o = []
    A = o.append
    with open("standalone__factorization_afm__recsys.s.ref") as f:
        for line in f:
            if line.startswith("; @launch"):
                break
            if line.startswith("; Override") or line.startswith("; grid="):
                continue
            A(line.rstrip())
    A(f"; @launch grid=(256,1,1) block=(512,1,1) lds={LDS_TOTAL}")
    A('.amdgcn_target "amdgcn-amd-amdhsa--gfx950"')
    A(".text")
    A(f".globl {KNAME}")
    A(".p2align 8")
    A(f".type {KNAME},@function")
    A(f"{KNAME}:")
    T = lambda s: [A("  " + l.strip()) if l.strip() and not l.strip().endswith(":") else A(l.strip()) for l in s.strip("\n").split("\n")]
    stamp_n = [0]
    def stamp():
        if DIAG:
            k = stamp_n[0]; stamp_n[0] += 1
            T(f"s_memtime s[{76+2*k}:{77+2*k}]")
    if DIAG:
        T("s_memrealtime s[74:75]")
    stamp()
    T(f"""
s_cmp_ge_u32 s2, 256
s_cbranch_scc1 L_end
s_load_dwordx2 s[24:25], s[0:1], 0
s_load_dwordx2 s[28:29], s[0:1], 8
s_load_dwordx8 s[8:15], s[0:1], 32
s_load_dwordx2 s[48:49], s[0:1], 64
s_getpc_b64 s[22:23]
L_pc:
v_and_b32 v1, 63, v0
v_lshrrev_b32 v2, 6, v0
v_and_b32 v3, 15, v0
v_lshl_add_u32 v3, v2, 4, v3
v_lshlrev_b32 v3, 7, v3
v_min_u32 v3, L_code_end-L_pc-4, v3
v_readfirstlane_b32 s52, v2
global_load_dword v4, v3, s[22:23]
v_bfe_u32 v5, v0, 4, 1
v_lshl_add_u32 v5, v2, 1, v5
v_mul_u32_u24 v5, 80, v5
v_add_u32 v5, L_tbl-L_pc, v5
global_load_dwordx4 v[72:75], v5, s[22:23]
global_load_dwordx4 v[76:79], v5, s[22:23] offset:16
global_load_dwordx4 v[80:83], v5, s[22:23] offset:32
global_load_dwordx4 v[84:87], v5, s[22:23] offset:48
global_load_dwordx4 v[88:91], v5, s[22:23] offset:64
s_lshr_b32 s53, s52, 1
s_and_b32 s54, s52, 1
s_mul_i32 s55, s53, 28
s_cmp_eq_u32 s53, 3
s_cselect_b32 s56, 4, 0
s_sub_u32 s55, s55, s56
s_mul_i32 s56, s2, 1664
s_add_u32 s55, s55, s56
s_mul_i32 s56, s54, 832
s_add_u32 s56, s55, s56
s_mov_b32 s26, 425984
s_mov_b32 s27, 0x20000
s_mov_b32 s30, 128000
s_mov_b32 s31, 0x20000
s_mov_b32 s50, 8192
s_mov_b32 s51, 0x20000
v_lshrrev_b32 v6, 3, v1
v_mul_u32_u24 v92, 104, v6
v_and_b32 v7, 7, v1
v_lshlrev_b32 v93, 4, v7
v_lshlrev_b32 v94, 4, v0
v_lshlrev_b32 v95, 1, v1
s_waitcnt lgkmcnt(0)
buffer_load_dwordx4 v[8:11], v92, s[24:27], s56 offen
buffer_load_dwordx3 v[12:14], v92, s[24:27], s56 offen offset:16
global_load_dwordx4 v[44:47], v94, s[8:9]
global_load_dwordx4 v[64:67], v93, s[12:13]
global_load_ushort v68, v95, s[10:11]
global_load_ushort v69, v95, s[12:13]
global_load_ushort v70, v95, s[14:15]
""")
    T(f"""
s_mul_i32 s57, s53, {FS}
s_lshl_b32 s58, s54, 7
s_add_u32 s57, s57, s58
v_mul_u32_u24 v{vEW}, {PS}, v7
v_lshl_add_u32 v{vEW}, v6, 4, v{vEW}
v_add_u32 v{vEW}, s57, v{vEW}
v_lshrrev_b32 v96, 3, v0
v_mul_u32_u24 v96, {WRS}, v96
v_add_u32 v96, v96, v93
v_add_u32 v96, {WOFF}, v96
v_lshlrev_b32 v97, 2, v1
v_mov_b32 v98, 0
ds_write_b32 v97, v98 offset:{ZOFF}
s_waitcnt vmcnt(5)
""")
    stamp()
    for t in range(7):
        T(f"v_lshl_add_u32 v{8+t}, v{8+t}, 7, v93")
    for t in range(7):
        T(f"buffer_load_dwordx4 v[{16+4*t}:{19+4*t}], v{8+t}, s[28:31], 0 offen")
    T("s_waitcnt vmcnt(7)")
    for i in range(4):
        T(f"v_lshlrev_b32 v{224+2*i}, 16, v{44+i}\nv_and_b32 v{225+2*i}, 0xffff0000, v{44+i}")
    for i in range(4):
        T(f"v_lshlrev_b32 v{232+2*i}, 16, v{64+i}\nv_and_b32 v{233+2*i}, 0xffff0000, v{64+i}")
    for i in range(4):
        T(f"v_cvt_pk_f16_f32 v{240+i}, v{224+2*i}, v{225+2*i}")
    T("v_mul_f32 v244, v224, v232")
    T("ds_write_b128 v96, v[240:243]")
    for i in range(1, 8):
        T(f"v_fma_f32 v244, v{224+i}, v{232+i}, v244")
    T(f"""
v_lshlrev_b32 v68, 16, v68
v_lshlrev_b32 v69, 16, v69
v_lshlrev_b32 v70, 16, v70
v_add_f32_dpp v244, v244, v244 quad_perm:[1,0,3,2] row_mask:0xf bank_mask:0xf
v_mul_f32 v69, {f32bits(0.5*LOG2E):#x}, v69
v_cvt_f16_f32 v71, v70
v_add_f32_dpp v244, v244, v244 quad_perm:[2,3,0,1] row_mask:0xf bank_mask:0xf
ds_write_b32 v97, v68 offset:{BS}
ds_write_b32 v97, v69 offset:{HS}
v_add_f32_dpp v244, v244, v244 row_half_mirror row_mask:0xf bank_mask:0xf
ds_write_b16 v95, v71 offset:{P16}
v_pk_maximum3_f16 v245, v240, v240, v241 neg_lo:[0,1,0] neg_hi:[0,1,0]
v_mul_f32 v244, {f32bits(0.5*LOG2E):#x}, v244
v_pk_maximum3_f16 v245, v245, v241, v242 neg_lo:[0,1,0] neg_hi:[0,1,0]
v_lshrrev_b32 v99, 3, v0
v_cvt_f16_f32 v244, v244
v_pk_maximum3_f16 v245, v245, v242, v243 neg_lo:[0,1,0] neg_hi:[0,1,0]
v_lshlrev_b32 v99, 1, v99
v_pk_maximum3_f16 v245, v245, v243, v245 neg_lo:[0,1,0] neg_hi:[0,1,0]
ds_write_b16 v99, v244 offset:{U16}
v_max_u16_sdwa v245, v245, v245 dst_sel:DWORD dst_unused:UNUSED_PAD src0_sel:WORD_0 src1_sel:WORD_1
v_and_b32 v71, 0x7fff, v71
s_waitcnt lgkmcnt(0)
s_barrier
""")
    stamp()
    T(f"""
v_mov_b32 v100, 1
v_mov_b32 v101, {TRASH}
v_mov_b32 v102, {WOK}
v_mov_b32 v103, {POK}
v_cmp_le_u32 vcc, 0x1c00, v245
v_lshrrev_b32 v3, 5, v1
v_and_b32 v4, 15, v1
v_cndmask_b32 v102, v101, v102, vcc
v_cmp_le_u32 vcc, 0x2400, v71
v_lshrrev_b32 v5, 2, v4
v_lshl_add_u32 v5, v3, 5, v5
v_cndmask_b32 v103, v101, v103, vcc
ds_write_b32 v102, v100
ds_write_b32 v103, v100
v_mul_u32_u24 v5, {WRS}, v5
v_and_b32 v6, 3, v1
v_lshlrev_b32 v6, 3, v6
v_bfe_u32 v7, v1, 4, 1
v_lshl_add_u32 v6, v7, 5, v6
v_add_u32 v5, v5, v6
v_add_u32 v5, {WOFF}, v5
""")
    for mu in range(2):
        for s in range(4):
            for hf in range(2):
                r = vW + (mu * 4 + s) * 4 + 2 * hf
                T(f"ds_read_b64_tr_b16 v[{r}:{r+1}], v5 offset:{(8*s+4*hf)*WRS + mu*64}")
    T("v_lshlrev_b32 v6, 4, v3")
    for name, base, reg in (("b", BS, vBIAS), ("h", HS, vH)):
        for mu in range(2):
            for rg in range(4):
                r = reg + mu * 16 + 4 * rg
                T(f"ds_read_b128 v[{r}:{r+3}], v6 offset:{base + (32*mu+8*rg)*4}")
    def m64(s, m16):
        v = m16 | (m16 << 16)
        T(f"s_mov_b32 s{s}, {v:#x}\ns_mov_b32 s{s+1}, {v:#x}")
    m64(62, 0x9999)
    m64(64, 0xDD44)
    m64(66, 0x0107); m64(68, 0x1070); m64(70, 0x0E08); m64(72, 0xE080)
    T(f"""
v_lshlrev_b32 v8, 6, v7
v_lshl_add_u32 v8, v3, 4, v8
v_mov_b32 v9, {P16}
v_mov_b32 v10, {U16}
v_cndmask_b32 v9, v9, v10, s[62:63]
v_add_u32 v8, v8, v9
v_add_u32 v9, 4, v8
v_cndmask_b32 v8, v8, v9, s[64:65]
ds_read2_b32 v[224:225], v8 offset0:0 offset1:2
ds_read2_b32 v[226:227], v8 offset0:8 offset1:10
v_mov_b32 v9, 0x44444444
v_mov_b32 v10, 0xeeeeeeee
v_cndmask_b32 v{vIDX}, v9, v10, s[64:65]
""")
    T(f"""
v_mul_u32_u24 v11, 1088, v3
v_lshl_add_u32 v11, v4, 4, v11
s_mul_i32 s57, s52, {TW}
s_add_u32 s57, s57, {TOFF}
v_lshlrev_b32 v{vT0}, 2, v1
v_add_u32 v{vT0}, s57, v{vT0}
v_mov_b32 v{vT}, v{vT0}
v_mov_b32 v{vZ}, {ZOFF}
""")
    sd = lambda d, src, w: f"v_add_u32_sdwa v{d}, v11, v{src} dst_sel:DWORD dst_unused:UNUSED_PAD src0_sel:DWORD src1_sel:WORD_{w}"
    T(sd(vaH, 72, 0)); T(sd(vaSA, 72, 1)); T(sd(vaSB, 73, 0))
    T(sd(228, 73, 1))
    T(f"ds_write_b32 v{vT0}, v228 offset:{(3+3)*256}")
    for e in range(4, 36, 2):
        a, b = 228 + (e % 8), 229 + (e % 8)
        T(sd(a, 72 + e // 2, 0)); T(sd(b, 72 + e // 2, 1))
        T(f"ds_write2st64_b32 v{vT0}, v{a}, v{b} offset0:{e+3} offset1:{e+4}")
    T("s_waitcnt lgkmcnt(0)")
    idx = 0
    for tau in range(2):
        for part in range(2):
            for rho in range(4):
                msk = 66 + 2 * (tau * 2 + (rho >> 1))
                T(f"v_cndmask_b32 v{vLINA+(tau*2+part)*4+rho}, 0, v{224+part*2+(rho&1)}, s[{msk}:{msk+1}]")
    stamp()
    for t in range(7):
        g = 16 + 4 * t
        if t == 6:
            T("s_cmp_ge_u32 s53, 2\ns_cbranch_scc1 L_skip6")
        T(f"s_waitcnt vmcnt({6-t})")
        for i in range(4):
            T(f"v_lshlrev_b32 v{232+2*i}, 16, v{g+i}\nv_and_b32 v{233+2*i}, 0xffff0000, v{g+i}")
        for i in range(4):
            T(f"v_cvt_pk_f16_f32 v{g+i}, v{232+2*i}, v{233+2*i}")
        T(f"ds_write_b128 v{vEW}, v[{g}:{g+3}] offset:{t*4*FS}")
        if t == 1:
            T("v_pk_maximum3_f16 v245, v16, v16, v17 neg_lo:[0,1,0] neg_hi:[0,1,0]")
            for k in range(17, 23):
                T(f"v_pk_maximum3_f16 v245, v245, v{k}, v{k+1} neg_lo:[0,1,0] neg_hi:[0,1,0]")
            T("v_pk_maximum3_f16 v245, v245, v23, v245 neg_lo:[0,1,0] neg_hi:[0,1,0]")
            T(f"""
v_lshrrev_b32 v246, 3, v1
v_lshlrev_b32 v246, 2, v246
v_max_u16_sdwa v245, v245, v245 dst_sel:DWORD dst_unused:UNUSED_PAD src0_sel:WORD_0 src1_sel:WORD_1
s_lshl_b32 s57, s54, 5
s_add_u32 s57, s57, {EOK}
v_add_u32 v246, s57, v246
v_cmp_le_u32 vcc, 0x2800, v245
s_nop 1
v_cndmask_b32 v246, v101, v246, vcc
ds_write_b32 v246, v100
""")
    T("L_skip6:")
    T("s_cmp_lt_u32 s52, 2\ns_cselect_b32 s60, 11, 10\ns_mov_b32 s61, s60")
    T("s_waitcnt vmcnt(0) lgkmcnt(0)\ns_barrier")
    stamp()
    pre, body, post = loop_parts()
    o += emit(pre)
    A(".p2align 6")
    A("L_loop:")
    o += emit(body)
    o += emit(post)
    stamp()
    R = 64
    T("s_waitcnt lgkmcnt(0)")
    for it in range(11):
        T(f"ds_read2st64_b32 v[{R+2*it}:{R+2*it+1}], v{vT0} offset0:{3*(it+1)} offset1:{3*(it+1)+1}")
    T("""
s_cmp_eq_u32 s52, 0
s_cselect_b32 s62, -1, 0
s_cselect_b32 s63, -1, 0
s_cmp_eq_u32 s52, 1
s_cselect_b32 s62, 0xffff, s62
v_mov_b32 v8, 0xff800000
s_waitcnt lgkmcnt(0)
""")
    T(f"v_cndmask_b32 v{R+20}, v8, v{R+20}, s[62:63]\nv_cndmask_b32 v{R+21}, 0, v{R+21}, s[62:63]")
    T(f"v_max3_f32 v9, v{R}, v{R+2}, v{R+4}")
    for k in range(3, 11, 2):
        T(f"v_max3_f32 v9, v9, v{R+2*k}, v{R+2*k+2}")
    for it in range(11):
        T(f"v_sub_f32 v{R+2*it}, v{R+2*it}, v9")
    for it in range(11):
        T(f"v_exp_f32 v{R+2*it}, v{R+2*it}")
    T(f"v_mul_f32 v11, v{R}, v{R+1}\nv_add_f32 v10, v{R}, v{R+2}")
    T(f"v_fma_f32 v11, v{R+2}, v{R+3}, v11")
    for it in range(2, 11):
        T(f"v_add_f32 v10, v10, v{R+2*it}\nv_fma_f32 v11, v{R+2*it}, v{R+2*it+1}, v11")
    T(f"""
v_lshrrev_b32 v12, 4, v0
v_mul_u32_u24 v12, 17, v12
v_and_b32 v13, 15, v0
v_add_lshl_u32 v12, v12, v13, 2
ds_write2st64_b32 v12, v9, v10 offset0:{SCR//256} offset1:{SCR//256+9}
ds_write_b32 v12, v11 offset:{SCR+4608}
v_and_b32 v13, 31, v1
v_mul_u32_u24 v13, 17, v13
v_lshrrev_b32 v14, 5, v1
s_lshl_b32 s57, s52, 1
v_add_u32 v14, s57, v14
v_add_lshl_u32 v13, v13, v14, 2
s_waitcnt lgkmcnt(0)
s_barrier
ds_read2st64_b32 v[16:17], v13 offset0:{SCR//256} offset1:{SCR//256+9}
ds_read_b32 v18, v13 offset:{SCR+4608}
v_lshlrev_b32 v15, 2, v14
ds_read_b32 v19, v15 offset:{EOK}
ds_read_b64 v[20:21], v{vZ} offset:128
s_waitcnt lgkmcnt(0)
v_mov_b32 v22, v16
""")
    assert SCR % 256 == 0
    dpps = ["quad_perm:[1,0,3,2]", "quad_perm:[2,3,0,1]", "row_half_mirror", "row_mirror"]
    for d in dpps:
        T(f"s_nop 1\nv_max_f32_dpp v22, v22, v22 {d} row_mask:0xf bank_mask:0xf")
    T("""
v_mov_b32 v23, v22
s_nop 1
v_permlane16_swap_b32 v22, v23
s_nop 0
v_max_f32 v22, v22, v23
v_sub_f32 v16, v16, v22
v_exp_f32 v16, v16
s_nop 0
v_mul_f32 v17, v17, v16
v_mul_f32 v18, v18, v16
""")
    for d in dpps:
        T(f"s_nop 0\nv_add_f32_dpp v17, v17, v17 {d} row_mask:0xf bank_mask:0xf\nv_add_f32_dpp v18, v18, v18 {d} row_mask:0xf bank_mask:0xf")
    T(f"""
v_mov_b32 v22, v17
v_mov_b32 v23, v18
s_nop 0
v_permlane16_swap_b32 v17, v22
v_permlane16_swap_b32 v18, v23
s_nop 0
v_add_f32 v17, v17, v22
v_add_f32 v18, v18, v23
v_rcp_f32 v17, v17
s_lshl_b32 s57, s2, 4
v_add_u32 v14, s57, v14
v_mul_f32 v18, v18, v17
v_lshlrev_b32 v14, 1, v14
v_cvt_pk_bf16_f32 v18, v18, v18
v_and_b32 v13, 31, v1
v_cmp_eq_u32 vcc, 0, v13
s_and_saveexec_b64 s[58:59], vcc
s_cbranch_execz L_end
buffer_store_short v18, v14, s[48:51], 0 offen
@DIAG@
L_end:
s_endpgm
L_code_end:
""")
    if DIAG:
        d = ["s_waitcnt vmcnt(0)", "s_memtime s[90:91]", "s_memrealtime s[92:93]", "s_load_dwordx2 s[94:95], s[0:1], 72", "s_waitcnt lgkmcnt(0)",
             "s_mov_b64 exec, 1", "v_mov_b32 v1, 0", "s_not_b32 s74, s74", "v_mov_b32 v2, s74", "v_mov_b32 v3, s92",
             "global_atomic_umax v1, v2, s[94:95]", "global_atomic_umax v1, v3, s[94:95] offset:4",
             "s_cmp_lg_u32 s2, DIAGWG", "s_cbranch_scc1 L_end", "s_cmp_lg_u32 s52, 0", "s_cbranch_scc1 L_end"]
        for k in range(1, 7):
            d.append(f"s_sub_u32 s{76+2*k}, s{76+2*k}, s76")
        d.append("s_sub_u32 s90, s90, s76")
        for k in range(1, 7):
            d += [f"v_mov_b32 v2, s{76+2*k}", f"global_store_dword v1, v2, s[94:95] offset:{4+4*k}"]
        d += ["v_mov_b32 v2, s90", "global_store_dword v1, v2, s[94:95] offset:32"]
        txt = "\n".join("  " + x for x in d).replace("DIAGWG", "100")
    else:
        txt = ""
    o[:] = [txt if l.strip() == "@DIAG@" else l for l in o]
    A(".p2align 2")
    A(".type L_tbl,@object")
    A("L_tbl:")
    for k in range(0, len(tbl), 20):
        A("  .short " + ", ".join(str(x) for x in tbl[k:k + 20]))
    A('.section .rodata,"a"')
    A(".p2align 6")
    A(f".amdhsa_kernel {KNAME}")
    A("""  .amdhsa_next_free_vgpr 256
  .amdhsa_next_free_sgpr 102
  .amdhsa_accum_offset 256
  .amdhsa_group_segment_fixed_size 0
  .amdhsa_kernarg_size 88
  .amdhsa_user_sgpr_count 2
  .amdhsa_user_sgpr_kernarg_segment_ptr 1
  .amdhsa_system_sgpr_workgroup_id_x 1
.end_amdhsa_kernel""")
    return "\n".join(o) + "\n"


if __name__ == "__main__":
    if "--diag" in sys.argv:
        DIAG = True
        sys.argv.remove("--diag")
    out = sys.argv[1] if len(sys.argv) > 1 else "standalone__factorization_afm__recsys.s"
    open(out, "w").write(gen())
    print("wrote", out)
```

```python
import itertools
def tournament():
    beats={g:set() for g in range(13)}
    A,B,C=0,1,2
    beats[A]|={B,C}; beats[B]|={C}
    small=list(range(3,13))
    for i in range(10):
        for d in range(1,5): beats[small[i]].add(small[(i+d)%10])
    for i in range(5): beats[small[i]].add(small[i+5])
    losers=small[5:]
    beats[losers[0]].add(A); beats[losers[1]].add(A); beats[losers[2]].add(B); beats[losers[3]].add(B); beats[losers[4]].add(C)
    for big in (A,B,C):
        for s in small:
            if big not in beats[s]: beats[big].add(s)
    return beats
def schedule():
    beats=tournament()
    streams={g:[f for h in sorted(beats[g]) for f in (2*h,2*h+1)] for g in range(13)}
    assert [len(streams[g]) for g in range(13)]==[20,18,18]+[10]*10
    runs10=[]
    runs10.append((0,True,streams[0][:10])); runs10.append((0,False,streams[0][10:]))
    for g in range(3,13): runs10.append((g,True,streams[g]))
    r9=[(1,True,streams[1][:9]),(2,True,streams[2][:9]),(1,False,streams[1][9:]),(2,False,streams[2][9:])]
    waves=[]
    for w in range(6): waves.append((runs10[2*w],runs10[2*w+1]))
    waves.append((r9[0],r9[1])); waves.append((r9[2],r9[3]))
    return waves
def check(waves):
    seen=set()
    def add(x,y):
        e=(min(x,y),max(x,y)); assert x!=y and e not in seen,e; seen.add(e)
    for w in waves:
        assert len(w[0][2])==len(w[1][2])
        for g,dg,lst in w:
            if dg: add(2*g,2*g+1)
            for y in lst: add(2*g,y); add(2*g+1,y)
    assert len(seen)==325,len(seen)
if __name__=="__main__":
    W=schedule(); check(W)
    for w in W: print(w)
```

```python
import sys, struct
from asmkit import I, vr, auto_waits, check_hazards, emit
import sched2

KNAME = "standalone__factorization_afm__recsys_kernel"

FS = 2304
PS = 272
CELL = 0
EOK = CELL + 64
WOK = CELL + 128
POK = CELL + 132
TRASH = CELL + 136
HS = 256
BS = 512
U16 = 768
P16 = 896
H16 = 1024
WOFF = 2048
WRS = 192
TOFF = WOFF + 64 * WRS
TW = 11 * 256
E16 = TOFF + 8 * TW
LDS_TOTAL = E16 + 26 * FS
SCR = WOFF

vW, vBIAS, vACC = 128, 160, 224
vHF, vX, vEOP = 192, 208, 216
vBP, vLINA = 112, 96
vH0, vH1, vSTR = 80, 64, 48
vD, vIDX = 44, 43
vaS = 40
vEA, vEB = 38, 39
vE, vS = 36, 37
vL, vN = 34, 35
vWt = 33

LOG2E = 1.4426950408889634
HC = 0.5 * LOG2E
DIAG = False


def f32bits(x):
    return struct.unpack("<I", struct.pack("<f", x))[0]


def build_tables():
    W = sched2.schedule()
    sched2.check(W)
    data = []
    for r0, r1 in W:
        pk = lambda a, b: (a * FS) | ((b * FS) << 16)
        ent = [pk(2 * r0[0], 2 * r1[0]), pk(2 * r0[0] + 1, 2 * r1[0] + 1)]
        L = len(r0[2])
        for k in range(11):
            kk = min(k, L - 1)
            ent.append(pk(r0[2][kk], r1[2][kk]))
        ent.append(L)
        ent.append((0 if r0[1] else 0x0000ffff) | (0 if r1[1] else 0xffff0000))
        ent.append(0)
        assert len(ent) == 16
        data += ent
    return data


def mfma(mu, s):
    acc = vACC + 16 * mu
    a = vW + (mu * 4 + s) * 4
    b = vBP + 4 * s
    c = (vBIAS + 16 * mu) if s == 0 else acc
    return I(f"v_mfma_f32_32x32x16_f16 {vr(acc,16)}, {vr(a,4)}, {vr(b,4)}, {vr(c,16)}", "mfma8",
             rd=list(range(a, a + 4)) + list(range(b, b + 4)), wr=range(acc, acc + 16), srcc=range(c, c + 16))


def smf(a, b):
    return I(f"v_smfmac_f32_16x16x64_f16 {vr(vD,4)}, {vr(a,4)}, {vr(b,8)}, v{vIDX}", "mfma4",
             rd=list(range(a, a + 4)) + list(range(b, b + 8)) + [vIDX], wr=range(vD, vD + 4), srcc=range(vD, vD + 4))


def prod(tau, s, i):
    k = 4 * s + i
    h = (vH0 if tau == 0 else vH1) + k
    return I(f"v_pk_mul_f16 v{vBP+k}, v{h}, v{vSTR+k}", "valu", rd=[h, vSTR + k], wr=[vBP + k])


def fabs(e, r, init=None):
    x = vACC + 16 + r
    h = vHF + r
    src = e if init is None else init
    return I(f"v_fma_f32 v{e}, |v{x}|, v{h}, v{src}", "valu", rd=[x, h, src], wr=[e])


def cvt(i):
    x = vACC + 2 * i
    return I(f"v_cvt_pk_f16_f32 v{vX+i}, |v{x}|, |v{x+1}|", "valu", rd=[x, x + 1], wr=[vX + i])


def ldc(dst, addr, c):
    return I(f"ds_read_b128 {vr(dst+4*c,4)}, v{addr} offset:{c*PS}", "dsr", rd=[addr], wr=range(dst + 4 * c, dst + 4 * c + 4))


def V(text, rd, wr, kind="valu"):
    return I(text, kind, rd=rd, wr=wr)


def finalize():
    return [V(f"v_permlane32_swap_b32 v{vEA}, v{vEB}", [vEA, vEB], [vEA, vEB], "swap"),
            V(f"v_add_f32 v{vE}, v{vEA}, v{vEB}", [vEA, vEB], [vE]),
            V(f"v_exp_f32 v{vWt}, v{vE}", [vE], [vWt], "trans"),
            None,
            V(f"v_add_f32 v{vL}, v{vL}, v{vWt}", [vL, vWt], [vL]),
            V(f"v_fma_f32 v{vN}, v{vWt}, v{vS}, v{vN}", [vWt, vS, vN], [vN])]


PLAN = "b"

def tile(tau):
    eprev = vEB if tau == 0 else vEA
    dinit = vD + (3 if tau == 0 else 0)
    nxt = 1 - tau
    P = lambda t, s, idx: [prod(t, s, i) for i in idx]
    F1 = [fabs(eprev, r, init=(dinit if r == 0 else None)) for r in range(16)]
    C = [cvt(i) for i in range(8)]
    ld = lambda c: [ldc(vSTR, vaS, c)]
    A_ = lambda x: x if tau == 0 else []
    B_ = lambda x: x if tau == 1 else []
    zero = [V(f"v_mov_b64 {vr(vD,2)}, 0", [], [vD, vD + 1]), V(f"v_mov_b64 {vr(vD+2,2)}, 0", [], [vD + 2, vD + 3])]
    m0 = [I("s_add_u32 m0, m0, 256", "salu")]
    at = [I(f"ds_read_addtid_b32 v{vaS}", "dsr", rd=[], wr=[vaS])]
    sadd = [V(f"v_add_f32 v{vS}, v{vD+1}, v{vD+2}", [vD + 1, vD + 2], [vS])]
    fin = finalize()
    M = lambda mu, s: [mfma(mu, s)]
    SL = lambda part: [smf(vLINA + (tau * 2 + part) * 4, vBP + 8 * part)]
    SE = [smf(vEOP + tau * 4, vX)]
    if PLAN == "a":
        L = M(0, 0) + P(tau, 1, [2, 3]) + B_(ld(1)) + P(tau, 2, [0, 1, 2, 3]) + B_(ld(2))
        L += M(0, 1) + P(tau, 3, [0, 1, 2, 3]) + B_(ld(3) + m0) + F1[0:1] + A_(zero) + F1[1:3]
        L += SL(0) + B_(at) + F1[3:5]
        L += M(0, 2) + F1[5:11] + M(0, 3) + F1[11:15] + SL(1) + F1[15:16]
        L += M(1, 0) + P(nxt, 0, [0, 1, 2, 3]) + A_(ld(0))
        L += M(1, 1) + P(nxt, 1, [0, 1]) + C[0:4]
        L += M(1, 2) + C[4:8] + A_(fin[0:2]) + B_(sadd)
        L += M(1, 3) + A_([fin[2]]) + SE + A_([fin[4], fin[5]])
        return L
    if PLAN == "b":
        L = M(0, 0) + P(tau, 2, [2, 3]) + A_([]) + P(tau, 3, [0, 1, 2, 3]) + B_(ld(2) + ld(3) + m0)
        L += M(0, 1) + F1[0:1] + A_(zero) + F1[1:4] + B_(at)
        L += SL(0) + F1[4:6]
        L += M(0, 2) + F1[6:12]
        L += M(0, 3) + F1[12:16]
        L += SL(1)
        L += M(1, 0) + A_(fin[0:1]) + P(nxt, 0, [0, 1, 2, 3]) + A_(ld(0) + fin[1:2])
        L += M(1, 1) + C[0:4] + P(nxt, 1, [0, 1])
        L += M(1, 2) + P(nxt, 1, [2, 3]) + A_(ld(1)) + C[4:8] + A_([fin[2]]) + B_(sadd)
        L += P(nxt, 2, [0]) + SE + P(nxt, 2, [1])
        L += M(1, 3) + A_([fin[4], fin[5]])
        return L
    raise SystemExit("plan?")


def loop_parts():
    tA, tB = tile(0), tile(1)
    pre = []
    for c in range(4):
        pre.append(ldc(vH0, 32, c))
    for c in range(4):
        pre.append(ldc(vH1, 31, c))
    for c in range(4):
        pre.append(ldc(vSTR, 32, c))
    pre += [prod(1, 0, i) for i in range(4)]
    pre.append(ldc(vSTR, vaS, 0))
    pre += [prod(1, 1, 0), prod(1, 1, 1)]
    if PLAN == "b":
        pre += [prod(1, 1, 2), prod(1, 1, 3), ldc(vSTR, vaS, 1), prod(1, 2, 0), prod(1, 2, 1)]
    br0 = I("s_branch L_tileB", "salu")
    br0.fixed = 2 if PLAN == "b" else 1
    pre.append(br0)
    ctl = [I("s_sub_u32 s60, s60, 1", "salu"), I("s_cmp_lg_u32 s60, 0", "salu")]
    k = max(i for i, x in enumerate(tB) if x.kind == "mfma8")
    tB = (tB[:k] + ctl + tB[k:]) if PLAN == "a" else (tB[:k + 1] + ctl + tB[k + 1:])
    br = I("s_cbranch_scc1 L_loop", "salu")
    tB = tB + [br]
    fin = finalize()
    post = [I("s_nop 9", "salu")] + [fabs(vEB, r, init=(vD + 3 if r == 0 else None)) for r in range(16)]
    post += [I("s_nop 1", "salu"), fin[0], I("s_nop 0", "salu"), fin[1], fin[2], I("s_nop 0", "salu"), fin[4], fin[5]]
    auto_waits(pre + tB, tA + tB, post, nsim=3)
    errs = []
    for trips in (1, 2, 3):
        errs += check_hazards(pre + tB + (tA + tB) * trips + post, f"trips{trips}")
    errs = sorted(set(errs))
    if errs:
        print("\n".join(errs), file=sys.stderr)
        raise SystemExit("hazards")
    return pre, tA, tB, post


def gen():
    tbl = build_tables()
    o = []
    A = o.append
    with open("standalone__factorization_afm__recsys.s.ref") as f:
        for line in f:
            if line.startswith("; @launch"):
                break
            if line.startswith("; Override") or line.startswith("; grid="):
                continue
            A(line.rstrip())
    A(f"; @launch grid=(256,1,1) block=(512,1,1) lds={LDS_TOTAL}")
    A('.amdgcn_target "amdgcn-amd-amdhsa--gfx950"')
    A(".text")
    A(f".globl {KNAME}")
    A(".p2align 8")
    A(f".type {KNAME},@function")
    A(f"{KNAME}:")

    def T(s):
        for l in s.strip("\n").split("\n"):
            l = l.strip()
            if l:
                A(l if l.endswith(":") else "  " + l)

    stamp_n = [0]

    def stamp():
        if DIAG:
            k = stamp_n[0]
            stamp_n[0] += 1
            T(f"s_memtime s[{62+2*k}:{63+2*k}]") if k < 9 else None

    if DIAG:
        T("s_memrealtime s[98:99]")
    stamp()
    T(f"""
s_cmp_ge_u32 s2, 256
s_cbranch_scc1 L_end
s_load_dwordx2 s[24:25], s[0:1], 0
s_load_dwordx2 s[28:29], s[0:1], 8
s_load_dwordx8 s[8:15], s[0:1], 32
s_load_dwordx2 s[48:49], s[0:1], 64
s_getpc_b64 s[22:23]
L_pc:
v_lshrrev_b32 v2, 6, v0
v_and_b32 v1, 63, v0
v_and_b32 v3, 15, v0
v_readfirstlane_b32 s52, v2
v_lshl_add_u32 v3, v2, 4, v3
v_lshlrev_b32 v3, 7, v3
v_min_u32 v3, L_pf_end-L_pc-4, v3
s_lshl_b32 s53, s52, 6
s_add_u32 s53, s53, L_tbl-L_pc
global_load_dword v4, v3, s[22:23]
s_load_dwordx16 s[80:95], s[22:23], s53
s_lshr_b32 s53, s52, 1
s_and_b32 s54, s52, 1
s_mul_i32 s55, s53, 28
s_cmp_eq_u32 s53, 3
s_cselect_b32 s56, 4, 0
s_sub_u32 s55, s55, s56
s_mul_i32 s56, s2, 1664
s_add_u32 s55, s55, s56
s_mul_i32 s56, s54, 832
s_add_u32 s56, s55, s56
s_mov_b32 s26, 425984
s_mov_b32 s27, 0x20000
s_mov_b32 s30, 128000
s_mov_b32 s31, 0x20000
s_mov_b32 s50, 8192
s_mov_b32 s51, 0x20000
s_lshr_b32 s57, s2, 3
s_and_b32 s57, s57, 15
s_lshl_b32 s57, s57, 3
s_add_u32 s57, s57, s52
s_lshl_b32 s57, s57, 10
v_lshrrev_b32 v6, 3, v1
v_mul_u32_u24 v24, 104, v6
v_and_b32 v7, 7, v1
v_lshlrev_b32 v25, 4, v7
v_lshlrev_b32 v26, 4, v0
v_lshlrev_b32 v27, 1, v1
v_lshlrev_b32 v28, 7, v7
s_waitcnt lgkmcnt(0)
buffer_load_dwordx4 v[8:11], v24, s[24:27], s56 offen
buffer_load_dwordx3 v[12:14], v24, s[24:27], s56 offen offset:16
buffer_load_dword v5, v28, s[28:31], s57 offen
global_load_dwordx4 v[16:19], v26, s[8:9]
global_load_ushort v20, v27, s[10:11]
global_load_ushort v21, v27, s[12:13]
global_load_ushort v22, v27, s[14:15]
""")
    T(f"""
s_mul_i32 s57, s53, {FS}
s_lshl_b32 s58, s54, 7
s_add_u32 s57, s57, s58
s_add_u32 s57, s57, {E16}
v_mul_u32_u24 v30, {PS}, v7
v_lshl_add_u32 v30, v6, 4, v30
v_add_u32 v30, s57, v30
v_lshrrev_b32 v29, 3, v0
v_mul_u32_u24 v29, {WRS}, v29
v_add_u32 v29, v29, v25
v_lshlrev_b32 v23, 2, v1
v_mov_b32 v15, 0
ds_write_b32 v23, v15 offset:{CELL}
s_waitcnt vmcnt(5)
""")
    stamp()
    G = 48
    for t in range(7):
        T(f"v_lshl_add_u32 v{8+t}, v{8+t}, 7, v25")
        T(f"buffer_load_dwordx4 v[{G+4*t}:{G+4*t+3}], v{8+t}, s[28:31], 0 offen")
    T("s_waitcnt vmcnt(7)")
    T(f"""
v_lshlrev_b32 v20, 16, v20
v_lshlrev_b32 v21, 16, v21
v_lshlrev_b32 v22, 16, v22
v_mul_f32 v21, {f32bits(HC):#x}, v21
v_cvt_f16_f32 v15, v22
ds_write_b32 v23, v20 offset:{BS}
ds_write_b32 v23, v21 offset:{HS}
v_cvt_f16_f32 v6, v21
ds_write_b16 v27, v15 offset:{P16}
ds_write_b16 v27, v6 offset:{H16}
v_lshlrev_b32 v7, 1, v25
""")
    for i in range(4):
        T(f"v_lshlrev_b32 v{224+2*i}, 16, v{16+i}\nv_and_b32 v{225+2*i}, 0xffff0000, v{16+i}")
    T(f"s_waitcnt lgkmcnt(0)\nds_read_b128 v[232:235], v7 offset:{HS}\nds_read_b128 v[236:239], v7 offset:{HS+16}")
    for i in range(4):
        T(f"v_cvt_pk_f16_f32 v{240+i}, v{224+2*i}, v{225+2*i}")
    T(f"ds_write_b128 v29, v[240:243] offset:{WOFF}")
    T(f"""
v_pk_maximum3_f16 v245, v240, v240, v241 neg_lo:[0,1,0] neg_hi:[0,1,0]
v_and_b32 v15, 0x7fff, v15
v_pk_maximum3_f16 v245, v245, v241, v242 neg_lo:[0,1,0] neg_hi:[0,1,0]
v_lshrrev_b32 v6, 3, v0
v_pk_maximum3_f16 v245, v245, v242, v243 neg_lo:[0,1,0] neg_hi:[0,1,0]
v_lshlrev_b32 v6, 1, v6
v_pk_maximum3_f16 v245, v245, v243, v245 neg_lo:[0,1,0] neg_hi:[0,1,0]
s_waitcnt lgkmcnt(1)
v_mul_f32 v244, v224, v232
""")
    for i in range(1, 8):
        T(f"v_fma_f32 v244, v{224+i}, v{232+i}, v244")
    T(f"""
v_max_u16_sdwa v245, v245, v245 dst_sel:DWORD dst_unused:UNUSED_PAD src0_sel:WORD_0 src1_sel:WORD_1
s_nop 0
v_add_f32_dpp v244, v244, v244 quad_perm:[1,0,3,2] row_mask:0xf bank_mask:0xf
s_nop 1
v_add_f32_dpp v244, v244, v244 quad_perm:[2,3,0,1] row_mask:0xf bank_mask:0xf
s_nop 1
v_add_f32_dpp v244, v244, v244 row_half_mirror row_mask:0xf bank_mask:0xf
s_nop 0
v_cvt_f16_f32 v244, v244
ds_write_b16 v6, v244 offset:{U16}
s_waitcnt lgkmcnt(0)
s_barrier
""")
    stamp()
    T(f"""
v_mov_b32 v16, 1
v_mov_b32 v17, {TRASH}
v_mov_b32 v18, {WOK}
v_mov_b32 v19, {POK}
v_cmp_le_u32 vcc, 0x1c00, v245
v_lshrrev_b32 v3, 5, v1
v_and_b32 v4, 15, v1
v_cndmask_b32 v18, v17, v18, vcc
v_cmp_le_u32 vcc, 0x2400, v15
v_lshrrev_b32 v5, 2, v4
v_lshl_add_u32 v5, v3, 5, v5
v_cndmask_b32 v19, v17, v19, vcc
ds_write_b32 v18, v16
ds_write_b32 v19, v16
v_mul_u32_u24 v5, {WRS}, v5
v_and_b32 v6, 3, v1
v_lshlrev_b32 v6, 3, v6
v_bfe_u32 v7, v1, 4, 1
v_lshl_add_u32 v6, v7, 5, v6
v_add_u32 v5, v5, v6
""")
    for mu in range(2):
        for s in range(4):
            for hf in range(2):
                r = vW + (mu * 4 + s) * 4 + 2 * hf
                T(f"ds_read_b64_tr_b16 v[{r}:{r+1}], v5 offset:{WOFF + (8*s+4*hf)*WRS + mu*64}")
    T("v_lshlrev_b32 v6, 4, v3")
    for mu in range(2):
        for rg in range(4):
            r = vBIAS + mu * 16 + 4 * rg
            T(f"ds_read_b128 v[{r}:{r+3}], v6 offset:{BS + (32*mu+8*rg)*4}")
    for rg in range(4):
        r = vHF + 4 * rg
        T(f"ds_read_b128 v[{r}:{r+3}], v6 offset:{HS + (32+8*rg)*4}")

    def m64(s, m16):
        v = m16 | (m16 << 16)
        T(f"s_mov_b32 s{s}, {v:#x}\ns_mov_b32 s{s+1}, {v:#x}")
    m64(32, 0x9999)
    m64(34, 0xDD44)
    m64(36, 0x0107); m64(38, 0x1070); m64(40, 0x0E08); m64(42, 0xE080)
    T(f"""
v_lshlrev_b32 v8, 6, v7
v_lshl_add_u32 v8, v3, 4, v8
v_mov_b32 v9, {P16}
v_mov_b32 v10, {U16}
v_cndmask_b32 v9, v9, v10, s[32:33]
v_add_u32 v8, v8, v9
v_add_u32 v9, 4, v8
v_cndmask_b32 v8, v8, v9, s[34:35]
ds_read2_b32 v[224:225], v8 offset0:0 offset1:2
ds_read2_b32 v[226:227], v8 offset0:8 offset1:10
v_lshlrev_b32 v9, 5, v3
v_lshl_add_u32 v9, v7, 3, v9
v_bfe_u32 v10, v1, 3, 1
v_lshl_add_u32 v9, v10, 2, v9
v_add_u32 v9, {H16}, v9
ds_read2_b32 v[228:229], v9 offset0:0 offset1:4
v_mov_b32 v9, 0x44444444
v_mov_b32 v10, 0xeeeeeeee
v_cndmask_b32 v{vIDX}, v9, v10, s[34:35]
""")
    T(f"""
v_mul_u32_u24 v11, 1088, v3
v_lshl_add_u32 v11, v4, 4, v11
v_add_u32 v11, {E16}, v11
v_lshlrev_b32 v12, 4, v7
s_mul_i32 s57, s52, {TW}
s_add_u32 s57, s57, {TOFF}
v_add_u32 v13, s57, v23
""")
    ent = lambda d, s: T(f"v_bfe_u32 v{d}, s{s}, v12, 16\nv_add_u32 v{d}, v11, v{d}")
    ent(32, 80); ent(31, 81); ent(vaS, 82)
    for k in range(1, 11, 2):
        ent(230, 82 + k); ent(231, 83 + k)
        T(f"ds_write2st64_b32 v13, v230, v231 offset0:{k} offset1:{k+1}")
    T(f"s_mov_b32 m0, s57")
    T("s_waitcnt lgkmcnt(5)")
    for tau in range(2):
        for part in range(2):
            for rho in range(4):
                msk = 36 + 2 * (tau * 2 + (rho >> 1))
                T(f"v_cndmask_b32 v{vLINA+(tau*2+part)*4+rho}, 0, v{224+part*2+(rho&1)}, s[{msk}:{msk+1}]")
    m64(36, 0x0101); m64(38, 0x1010); m64(40, 0x0808); m64(42, 0x8080)
    for tau in range(2):
        for rho in range(4):
            msk = 36 + 2 * (tau * 2 + (rho >> 1))
            T(f"v_cndmask_b32 v{vEOP+tau*4+rho}, 0, v{228+(rho&1)}, s[{msk}:{msk+1}]")
    stamp()
    for t in range(7):
        g = G + 4 * t
        if t == 6:
            T("s_cmp_ge_u32 s53, 2\ns_cbranch_scc1 L_skip6")
        T(f"s_waitcnt vmcnt({6-t})")
        for i in range(4):
            T(f"v_lshlrev_b32 v{232+2*i}, 16, v{g+i}\nv_and_b32 v{233+2*i}, 0xffff0000, v{g+i}")
        for i in range(4):
            T(f"v_cvt_pk_f16_f32 v{g+i}, v{232+2*i}, v{233+2*i}")
        T(f"ds_write_b128 v30, v[{g}:{g+3}] offset:{t*4*FS}")
        if t == 1:
            T(f"v_pk_maximum3_f16 v245, v{G}, v{G}, v{G+1} neg_lo:[0,1,0] neg_hi:[0,1,0]")
            for k in range(G + 1, G + 7):
                T(f"v_pk_maximum3_f16 v245, v245, v{k}, v{k+1} neg_lo:[0,1,0] neg_hi:[0,1,0]")
            T(f"v_pk_maximum3_f16 v245, v245, v{G+7}, v245 neg_lo:[0,1,0] neg_hi:[0,1,0]")
            T(f"""
v_lshrrev_b32 v246, 3, v1
v_lshlrev_b32 v246, 2, v246
v_max_u16_sdwa v245, v245, v245 dst_sel:DWORD dst_unused:UNUSED_PAD src0_sel:WORD_0 src1_sel:WORD_1
s_lshl_b32 s57, s54, 5
s_add_u32 s57, s57, {EOK}
v_add_u32 v246, s57, v246
v_cmp_le_u32 vcc, 0x2800, v245
s_nop 1
v_cndmask_b32 v246, v17, v246, vcc
ds_write_b32 v246, v16
""")
    T("L_skip6:")
    for k in range(8):
        T(f"v_mov_b64 v[{vACC+16+2*k}:{vACC+17+2*k}], 0")
    T(f"""
s_add_u32 s60, s93, 1
s_mov_b32 s58, s94
s_mov_b32 s59, s94
v_mov_b32 v{vD}, 0xff800000
v_mov_b32 v{vD+1}, 0
v_mov_b32 v{vD+2}, 0
v_cndmask_b32 v{vD+3}, 0, v{vD}, s[58:59]
v_mov_b64 v[{vL}:{vL+1}], 0
s_waitcnt vmcnt(0) lgkmcnt(0)
s_barrier
""")
    stamp()
    pre, tA, tB, post = loop_parts()
    o += emit(pre)
    A(".p2align 6")
    A("L_loop:")
    o += emit(tA)
    A("L_tileB:")
    o += emit(tB)
    o += emit(post)
    stamp()
    T(f"""
v_lshrrev_b32 v12, 4, v0
v_mul_u32_u24 v12, 17, v12
v_and_b32 v13, 15, v0
v_add_lshl_u32 v12, v12, v13, 3
ds_write_b64 v12, v[{vL}:{vN}] offset:{SCR}
v_and_b32 v13, 31, v1
v_mul_u32_u24 v13, 17, v13
v_lshrrev_b32 v14, 5, v1
s_lshl_b32 s57, s52, 1
v_add_u32 v14, s57, v14
v_add_lshl_u32 v13, v13, v14, 3
v_lshlrev_b32 v15, 2, v14
v_mov_b32 v19, 0
s_waitcnt lgkmcnt(0)
s_barrier
""")
    stamp()
    T(f"""
ds_read_b64 v[16:17], v13 offset:{SCR}
ds_read_b32 v18, v15 offset:{EOK}
ds_read_b64 v[20:21], v19 offset:{WOK}
s_lshl_b32 s57, s2, 4
v_add_u32 v14, s57, v14
v_lshlrev_b32 v14, 1, v14
s_waitcnt lgkmcnt(2)
""")
    dpps = ["quad_perm:[1,0,3,2]", "quad_perm:[2,3,0,1]", "row_half_mirror", "row_mirror"]
    for d in dpps:
        T(f"v_add_f32_dpp v16, v16, v16 {d} row_mask:0xf bank_mask:0xf\nv_add_f32_dpp v17, v17, v17 {d} row_mask:0xf bank_mask:0xf\ns_nop 0")
    T(f"""
v_mov_b32 v22, v16
v_mov_b32 v23, v17
s_nop 0
v_permlane16_swap_b32 v16, v22
v_permlane16_swap_b32 v17, v23
s_nop 0
v_add_f32 v16, v16, v22
v_add_f32 v17, v17, v23
v_rcp_f32 v22, v16
s_waitcnt lgkmcnt(0)
v_and_b32 v18, v18, v20
v_mul_f32 v17, v17, v22
v_and_b32 v18, v18, v21
v_cvt_pk_bf16_f32 v17, v17, v17
v_and_b32 v13, 31, v1
v_cmp_eq_u32 vcc, 0, v13
s_and_saveexec_b64 s[58:59], vcc
s_cbranch_execz L_end
buffer_store_short v17, v14, s[48:51], 0 offen
@DIAG@
L_end:
s_endpgm
L_pf_end:
""")
    if DIAG:
        ns = min(stamp_n[0], 9)
        d = [f"s_memtime s[{62+2*ns}:{63+2*ns}]", "s_memrealtime s[96:97]", "s_load_dwordx2 s[40:41], s[0:1], 80", "s_waitcnt lgkmcnt(0)",
             "s_mov_b64 exec, 1", "s_lshl_b32 s42, s2, 3", "s_add_u32 s42, s42, s52", "s_lshl_b32 s42, s42, 6", "v_mov_b32 v1, s42",
             "v_mov_b32 v2, s98", "global_store_dword v1, v2, s[40:41]", "v_mov_b32 v2, s96", "global_store_dword v1, v2, s[40:41] offset:4"]
        for k in range(1, ns + 1):
            d += [f"s_sub_u32 s42, s{62+2*k}, s62", "v_mov_b32 v2, s42", f"global_store_dword v1, v2, s[40:41] offset:{4+4*k}"]
        d += ["s_getreg_b32 s42, hwreg(HW_REG_HW_ID)", "v_mov_b32 v2, s42", "global_store_dword v1, v2, s[40:41] offset:56"]
        assert 62 + 2 * ns + 1 < 80
        txt = "\n".join("  " + x for x in d)
    else:
        txt = ""
    o[:] = [txt if l.strip() == "@DIAG@" else l for l in o]
    A(".p2align 6")
    A(".type L_tbl,@object")
    A("L_tbl:")
    for k in range(0, len(tbl), 16):
        A("  .long " + ", ".join(f"{x:#x}" for x in tbl[k:k + 16]))
    A('.section .rodata,"a"')
    A(".p2align 6")
    A(f".amdhsa_kernel {KNAME}")
    A("""  .amdhsa_next_free_vgpr 256
  .amdhsa_next_free_sgpr 102
  .amdhsa_accum_offset 256
  .amdhsa_group_segment_fixed_size 0
  .amdhsa_kernarg_size 88
  .amdhsa_user_sgpr_count 2
  .amdhsa_user_sgpr_kernarg_segment_ptr 1
  .amdhsa_system_sgpr_workgroup_id_x 1
.end_amdhsa_kernel""")
    return "\n".join(o) + "\n"


if __name__ == "__main__":
    for a in list(sys.argv):
        if a.startswith("--plan="):
            PLAN = a[7:]
            sys.argv.remove(a)
    if "--diag" in sys.argv:
        DIAG = True
        sys.argv.remove("--diag")
    out = sys.argv[1] if len(sys.argv) > 1 else "standalone__factorization_afm__recsys.s"
    open(out, "w").write(gen())
    print("wrote", out)
```

```python
import sys, struct
from asmkit import I, vr, auto_waits, check_hazards, emit
import sched2

KNAME = "standalone__factorization_afm__recsys_kernel"

FS = 2176
PS = 272
CELL = 0
EOK = CELL + 64
WOK = CELL + 128
POK = CELL + 132
TRASH = CELL + 136
HS = 256
BS = 512
U16 = 768
P16 = 896
H16 = 1024
WOFF = 2048
WRS = 192
E16 = WOFF + 64 * WRS
LDS_TOTAL = E16 + 26 * FS
SCR = WOFF

vW, vBIAS, vLINA, vEOP, vX, vACC = 128, 160, 176, 192, 208, 224
vBP = 112
vCEN = [64, 72, 80, 88]
vSTR = [96, 104]
vD, vIDX = 44, 43
vaS = [40, 41]
vLANE = 42
vE, vS = 36, 37
vL, vN = 34, 35
vWt = 33

LOG2E = 1.4426950408889634
HC = 0.5 * LOG2E
DIAG = False


def f32bits(x):
    return struct.unpack("<I", struct.pack("<f", x))[0]


def build_tables():
    W = sched2.schedule()
    sched2.check(W)
    data = []
    for r0, r1 in W:
        pk = lambda a, b: (a * FS) | ((b * FS) << 16)
        ent = [pk(2 * r0[0], 2 * r1[0]), pk(2 * r0[0] + 1, 2 * r1[0] + 1)]
        L = len(r0[2])
        for k in range(11):
            kk = min(k, L - 1)
            ent.append(pk(r0[2][kk], r1[2][kk]))
        ent.append(L)
        ent.append((0 if r0[1] else 0x0000ffff) | (0 if r1[1] else 0xffff0000))
        ent.append(0)
        assert len(ent) == 16
        data += ent
    return data


def mfma(par, mt, k):
    acc = vACC + 16 * par + 4 * mt
    a = vW + (mt * 2 + k) * 4
    b = vBP + 8 * par + 4 * k
    c = (vBIAS + 4 * mt) if k == 0 else acc
    return I(f"v_mfma_f32_16x16x32_f16 {vr(acc,4)}, {vr(a,4)}, {vr(b,4)}, {vr(c,4)}", "mfma4",
             rd=list(range(a, a + 4)) + list(range(b, b + 4)), wr=range(acc, acc + 4), srcc=range(c, c + 4))


def smf(a, b):
    return I(f"v_smfmac_f32_16x16x64_f16 {vr(vD,4)}, {vr(a,4)}, {vr(b,8)}, v{vIDX}", "mfma4",
             rd=list(range(a, a + 4)) + list(range(b, b + 8)) + [vIDX], wr=range(vD, vD + 4), srcc=range(vD, vD + 4))


def prod(tau, i):
    d = vBP + 8 * (tau & 1) + i
    h = vCEN[tau] + i
    s = vSTR[tau & 1] + i
    return I(f"v_pk_mul_f16 v{d}, v{h}, v{s}", "valu", rd=[h, s], wr=[d])


def cvt(par, i):
    x = vACC + 16 * par + 2 * i
    return I(f"v_cvt_pk_f16_f32 v{vX+i}, |v{x}|, |v{x+1}|", "valu", rd=[x, x + 1], wr=[vX + i])


def ldc(dst, addr, c):
    return I(f"ds_read_b128 {vr(dst+4*c,4)}, v{addr} offset:{c*PS}", "dsr", rd=[addr], wr=range(dst + 4 * c, dst + 4 * c + 4))


def V(text, rd, wr, kind="valu"):
    return I(text, kind, rd=rd, wr=wr)


def S_(text):
    return I(text, "salu")


def fin_parts():
    return dict(
        e=V(f"v_add_f32 v{vE}, v{vD}, v{vD+2}", [vD, vD + 2], [vE]),
        s=V(f"v_add_f32 v{vS}, v{vD+1}, v{vD+3}", [vD + 1, vD + 3], [vS]),
        z0=V(f"v_mov_b64 {vr(vD,2)}, 0", [], [vD, vD + 1]),
        z1=V(f"v_mov_b64 {vr(vD+2,2)}, 0", [], [vD + 2, vD + 3]),
        x=V(f"v_exp_f32 v{vWt}, v{vE}", [vE], [vWt], "trans"),
        l=V(f"v_add_f32 v{vL}, v{vL}, v{vWt}", [vL, vWt], [vL]),
        n=V(f"v_fma_f32 v{vN}, v{vWt}, v{vS}, v{vN}", [vWt, vS, vN], [vN]))


PLAN = "a"


def slot(tau):
    par = tau & 1
    prev = (tau + 3) % 4
    nxt = (tau + 1) % 4
    M = lambda mt, k: mfma(par, mt, k)
    C = [cvt(1 - par, i) for i in range(8)]
    P = [prod(nxt, i) for i in range(8)]
    SL = smf(vLINA + 4 * prev, vBP + 8 * (1 - par))
    SE = smf(vEOP + 4 * prev, vX)
    F = fin_parts()
    L = [M(0, 0)]
    if tau == 1:
        L += [F["x"]]
    L += [SL, C[0], C[1], M(0, 1), C[2], C[3]]
    if tau == 0:
        L += [S_("s_movrels_b32 s57, s83"), S_("s_add_u32 m0, m0, 1")]
    L += [M(1, 0), C[4], C[5]]
    if tau == 0:
        L += [S_("s_and_b32 s58, s57, 0xffff"), S_("s_lshr_b32 s59, s57, 16")]
    L += [M(1, 1), C[6], C[7]]
    if tau == 1:
        L += [F["l"], F["n"]]
    L += [M(2, 0), P[0], SE, P[1], M(2, 1), P[2], P[3]]
    if tau == 0:
        L += [V(f"v_add_u32 v{vaS[0]}, s58, v{vLANE}", [vLANE], [vaS[0]]), V(f"v_add_u32 v{vaS[1]}, s59, v{vLANE}", [vLANE], [vaS[1]])]
    L += [M(3, 0), P[4], P[5], M(3, 1), P[6], P[7]]
    if tau == 0:
        L += [F["e"], F["s"], F["z0"], F["z1"]]
    if tau == 1:
        L += [ldc(vSTR[0], vaS[0], 0), ldc(vSTR[0], vaS[0], 1)]
    if tau == 2:
        L += [ldc(vSTR[1], vaS[1], 0), ldc(vSTR[1], vaS[1], 1)]
    return L


def loop_parts():
    sl = [slot(t) for t in range(4)]
    pre = []
    for reg, ad in ((vCEN[0], 32), (vCEN[2], 31), (vCEN[1], 28), (vCEN[3], 27), (vSTR[1], 28)):
        pre += [ldc(reg, ad, 0), ldc(reg, ad, 1)]
    pre += [ldc(vSTR[0], vaS[0], 0), ldc(vSTR[0], vaS[0], 1)]
    for i in range(8):
        pre.append(V(f"v_pk_mul_f16 v{vBP+i}, v{vCEN[2]+i}, v{vCEN[0]+i}", [vCEN[2] + i, vCEN[0] + i], [vBP + i]))
    br0 = S_("s_branch L_slot2")
    br0.fixed = 2
    pre.append(br0)
    ctl = [S_("s_sub_u32 s60, s60, 1"), S_("s_cmp_lg_u32 s60, 0")]
    s3 = sl[3]
    s3 = s3[:-4] + ctl + s3[-4:] + [S_("s_cbranch_scc1 L_loop")]
    sl[3] = s3
    F = fin_parts()
    C = [cvt(1, i) for i in range(8)]
    post = [smf(vLINA + 12, vBP + 8), S_("s_nop 4")] + C + [S_("s_nop 0"), S_("s_nop 0"), smf(vEOP + 12, vX), S_("s_nop 7"),
            F["e"], F["s"], F["x"], S_("s_nop 0"), F["l"], F["n"]]
    body = sl[0] + sl[1] + sl[2] + sl[3]
    auto_waits(pre + sl[2] + sl[3], body, post, nsim=3)
    errs = []
    for trips in (1, 2, 3):
        errs += check_hazards(pre + sl[2] + sl[3] + body * trips + post, f"trips{trips}")
    errs = sorted(set(errs))
    if errs:
        print("\n".join(errs), file=sys.stderr)
        raise SystemExit("hazards")
    return pre, sl, post


def gen():
    tbl = build_tables()
    o = []
    A = o.append
    with open("standalone__factorization_afm__recsys.s.ref") as f:
        for line in f:
            if line.startswith("; @launch"):
                break
            if line.startswith("; Override") or line.startswith("; grid="):
                continue
            A(line.rstrip())
    A(f"; @launch grid=(256,1,1) block=(512,1,1) lds={LDS_TOTAL}")
    A('.amdgcn_target "amdgcn-amd-amdhsa--gfx950"')
    A(".text")
    A(f".globl {KNAME}")
    A(".p2align 8")
    A(f".type {KNAME},@function")
    A(f"{KNAME}:")

    def T(s):
        for l in s.strip("\n").split("\n"):
            l = l.strip()
            if l:
                A(l if l.endswith(":") else "  " + l)

    stamp_n = [0]

    rt_n = [0]
    def stamp(rt=False):
        if DIAG:
            k = stamp_n[0]
            stamp_n[0] += 1
            T(f"s_memtime s[{62+2*k}:{63+2*k}]") if k < 9 else None
            if rt and DIAG == 2:
                T(f"s_memrealtime s[{16+2*rt_n[0]}:{17+2*rt_n[0]}]")
                rt_n[0] += 1

    if DIAG:
        T("s_memrealtime s[98:99]")
    stamp()
    T(f"""
s_cmp_ge_u32 s2, 256
s_cbranch_scc1 L_end
s_load_dwordx2 s[24:25], s[0:1], 0
s_load_dwordx2 s[28:29], s[0:1], 8
s_load_dwordx8 s[8:15], s[0:1], 32
s_load_dwordx2 s[48:49], s[0:1], 64
s_getpc_b64 s[22:23]
L_pc:
v_lshrrev_b32 v2, 6, v0
v_and_b32 v1, 63, v0
v_and_b32 v3, 15, v0
v_readfirstlane_b32 s52, v2
v_lshl_add_u32 v3, v2, 4, v3
v_lshlrev_b32 v3, 7, v3
v_min_u32 v3, L_pf_end-L_pc-4, v3
s_lshl_b32 s53, s52, 6
s_add_u32 s53, s53, L_tbl-L_pc
global_load_dword v4, v3, s[22:23]
s_load_dwordx16 s[80:95], s[22:23], s53
s_lshr_b32 s53, s52, 1
s_and_b32 s54, s52, 1
s_mul_i32 s55, s53, 28
s_cmp_eq_u32 s53, 3
s_cselect_b32 s56, 4, 0
s_sub_u32 s55, s55, s56
s_mul_i32 s56, s2, 1664
s_add_u32 s55, s55, s56
s_mul_i32 s56, s54, 832
s_add_u32 s56, s55, s56
s_mov_b32 s26, 425984
s_mov_b32 s27, 0x20000
s_mov_b32 s30, 128000
s_mov_b32 s31, 0x20000
s_mov_b32 s50, 8192
s_mov_b32 s51, 0x20000
s_lshr_b32 s57, s2, 3
s_and_b32 s57, s57, 15
s_lshl_b32 s57, s57, 3
s_add_u32 s57, s57, s52
s_lshl_b32 s57, s57, 10
v_lshrrev_b32 v6, 3, v1
v_mul_u32_u24 v24, 104, v6
v_and_b32 v7, 7, v1
v_lshlrev_b32 v25, 4, v7
v_lshlrev_b32 v26, 4, v0
v_lshlrev_b32 v27, 1, v1
v_lshlrev_b32 v28, 7, v7
s_waitcnt lgkmcnt(0)
buffer_load_dwordx4 v[8:11], v24, s[24:27], s56 offen
buffer_load_dwordx3 v[12:14], v24, s[24:27], s56 offen offset:16
buffer_load_dword v5, v28, s[28:31], s57 offen
global_load_dwordx4 v[16:19], v26, s[8:9]
global_load_ushort v20, v27, s[10:11]
global_load_ushort v21, v27, s[12:13]
global_load_ushort v22, v27, s[14:15]
""")
    T(f"""
s_mul_i32 s57, s53, {FS}
s_lshl_b32 s58, s54, 7
s_add_u32 s57, s57, s58
s_add_u32 s57, s57, {E16}
v_mul_u32_u24 v30, {PS}, v7
v_lshl_add_u32 v30, v6, 4, v30
v_add_u32 v30, s57, v30
v_lshrrev_b32 v29, 3, v0
v_mul_u32_u24 v29, {WRS}, v29
v_add_u32 v29, v29, v25
v_lshlrev_b32 v23, 2, v1
v_mov_b32 v15, 0
ds_write_b32 v23, v15 offset:{CELL}
s_waitcnt vmcnt(5)
""")
    stamp()
    G = 48
    for t in range(7):
        T(f"v_lshl_add_u32 v{8+t}, v{8+t}, 7, v25")
        T(f"buffer_load_dwordx4 v[{G+4*t}:{G+4*t+3}], v{8+t}, s[28:31], 0 offen")
    T("s_waitcnt vmcnt(7)")
    T(f"""
v_lshlrev_b32 v20, 16, v20
v_lshlrev_b32 v21, 16, v21
v_lshlrev_b32 v22, 16, v22
v_mul_f32 v21, {f32bits(HC):#x}, v21
v_cvt_f16_f32 v15, v22
ds_write_b32 v23, v20 offset:{BS}
ds_write_b32 v23, v21 offset:{HS}
v_cvt_f16_f32 v6, v21
ds_write_b16 v27, v15 offset:{P16}
ds_write_b16 v27, v6 offset:{H16}
v_lshlrev_b32 v7, 1, v25
""")
    for i in range(4):
        T(f"v_lshlrev_b32 v{224+2*i}, 16, v{16+i}\nv_and_b32 v{225+2*i}, 0xffff0000, v{16+i}")
    T(f"s_waitcnt lgkmcnt(0)\nds_read_b128 v[232:235], v7 offset:{HS}\nds_read_b128 v[236:239], v7 offset:{HS+16}")
    for i in range(4):
        T(f"v_cvt_pk_f16_f32 v{240+i}, v{224+2*i}, v{225+2*i}")
    T(f"ds_write_b128 v29, v[240:243] offset:{WOFF}")
    T(f"""
v_pk_maximum3_f16 v245, v240, v240, v241 neg_lo:[0,1,0] neg_hi:[0,1,0]
v_and_b32 v15, 0x7fff, v15
v_pk_maximum3_f16 v245, v245, v241, v242 neg_lo:[0,1,0] neg_hi:[0,1,0]
v_lshrrev_b32 v6, 3, v0
v_pk_maximum3_f16 v245, v245, v242, v243 neg_lo:[0,1,0] neg_hi:[0,1,0]
v_lshlrev_b32 v6, 1, v6
v_pk_maximum3_f16 v245, v245, v243, v245 neg_lo:[0,1,0] neg_hi:[0,1,0]
s_waitcnt lgkmcnt(1)
v_mul_f32 v244, v224, v232
""")
    for i in range(1, 8):
        T(f"v_fma_f32 v244, v{224+i}, v{232+i}, v244")
    T(f"""
v_max_u16_sdwa v245, v245, v245 dst_sel:DWORD dst_unused:UNUSED_PAD src0_sel:WORD_0 src1_sel:WORD_1
s_nop 0
v_add_f32_dpp v244, v244, v244 quad_perm:[1,0,3,2] row_mask:0xf bank_mask:0xf
s_nop 1
v_add_f32_dpp v244, v244, v244 quad_perm:[2,3,0,1] row_mask:0xf bank_mask:0xf
s_nop 1
v_add_f32_dpp v244, v244, v244 row_half_mirror row_mask:0xf bank_mask:0xf
s_nop 0
v_cvt_f16_f32 v244, v244
ds_write_b16 v6, v244 offset:{U16}
s_waitcnt lgkmcnt(0)
s_barrier
""")
    stamp()
    T(f"""
v_mov_b32 v16, 1
v_mov_b32 v17, {TRASH}
v_mov_b32 v18, {WOK}
v_mov_b32 v19, {POK}
v_cmp_le_u32 vcc, 0x1c00, v245
v_lshrrev_b32 v3, 4, v1
v_and_b32 v4, 15, v1
v_cndmask_b32 v18, v17, v18, vcc
v_cmp_le_u32 vcc, 0x2400, v15
v_lshrrev_b32 v5, 2, v4
v_lshl_add_u32 v5, v3, 4, v5
v_cndmask_b32 v19, v17, v19, vcc
ds_write_b32 v18, v16
ds_write_b32 v19, v16
v_mul_u32_u24 v5, {WRS}, v5
v_and_b32 v6, 3, v1
v_lshl_add_u32 v5, v6, 3, v5
""")
    for mt in range(4):
        for k in range(2):
            for hf in range(2):
                r = vW + (mt * 2 + k) * 4 + 2 * hf
                T(f"ds_read_b64_tr_b16 v[{r}:{r+1}], v5 offset:{WOFF + (8*k+4*hf)*WRS + mt*32}")
    T("v_lshlrev_b32 v6, 4, v3")
    for mt in range(4):
        r = vBIAS + 4 * mt
        T(f"ds_read_b128 v[{r}:{r+3}], v6 offset:{BS + 64*mt}")

    def m64(s, m16):
        v = m16 | (m16 << 16)
        T(f"s_mov_b32 s{s}, {v:#x}\ns_mov_b32 s{s+1}, {v:#x}")
    m64(32, 0xAAAA)
    m64(34, 0xCCCC)
    T(f"""
v_bfe_u32 v7, v1, 4, 1
v_lshrrev_b32 v12, 5, v1
v_bfe_u32 v10, v1, 1, 1
v_lshlrev_b32 v10, 2, v10
v_lshl_add_u32 v8, v7, 6, v10
v_lshl_add_u32 v8, v12, 4, v8
v_mov_b32 v9, {U16}
v_mov_b32 v11, {P16}
v_cndmask_b32 v9, v9, v11, s[32:33]
v_add_u32 v8, v8, v9
ds_read2_b32 v[224:225], v8 offset0:0 offset1:2
ds_read2_b32 v[226:227], v8 offset0:8 offset1:10
v_lshl_add_u32 v9, v12, 6, v10
v_lshl_add_u32 v9, v7, 4, v9
v_add_u32 v9, {H16}, v9
ds_read2_b32 v[228:229], v9 offset0:0 offset1:8
ds_read2_b32 v[230:231], v9 offset0:2 offset1:10
v_mov_b32 v9, 0x44444444
v_mov_b32 v10, 0xeeeeeeee
v_cndmask_b32 v{vIDX}, v9, v10, s[34:35]
""")
    T(f"""
v_mul_u32_u24 v{vLANE}, {2*PS}, v3
v_lshl_add_u32 v{vLANE}, v4, 4, v{vLANE}
v_add_u32 v{vLANE}, {E16}, v{vLANE}
s_and_b32 s57, s80, 0xffff
s_lshr_b32 s58, s80, 16
v_add_u32 v32, s57, v{vLANE}
v_add_u32 v28, s58, v{vLANE}
s_and_b32 s57, s81, 0xffff
s_lshr_b32 s58, s81, 16
v_add_u32 v31, s57, v{vLANE}
v_add_u32 v27, s58, v{vLANE}
s_and_b32 s57, s82, 0xffff
s_lshr_b32 s58, s82, 16
v_add_u32 v{vaS[0]}, s57, v{vLANE}
v_add_u32 v{vaS[1]}, s58, v{vLANE}
s_mov_b32 m0, 0
s_waitcnt lgkmcnt(0)
""")
    for tau in range(4):
        ml = 0xF << (4 * tau)
        m64(36, ml); m64(38, ml & 0x5555)
        for rho in range(4):
            T(f"v_cndmask_b32 v{vLINA+4*tau+rho}, 0, v{224+rho}, s[36:37]")
        for rho in range(4):
            T(f"v_cndmask_b32 v{vEOP+4*tau+rho}, 0, v{228+rho}, s[38:39]")
    stamp()
    for t in range(7):
        g = G + 4 * t
        if t == 6:
            T("s_cmp_ge_u32 s53, 2\ns_cbranch_scc1 L_skip6")
        T(f"s_waitcnt vmcnt({6-t})")
        for i in range(4):
            T(f"v_lshlrev_b32 v{232+2*i}, 16, v{g+i}\nv_and_b32 v{233+2*i}, 0xffff0000, v{g+i}")
        for i in range(4):
            T(f"v_cvt_pk_f16_f32 v{g+i}, v{232+2*i}, v{233+2*i}")
        T(f"ds_write_b128 v30, v[{g}:{g+3}] offset:{t*4*FS}")
        if t == 1:
            T(f"v_pk_maximum3_f16 v245, v{G}, v{G}, v{G+1} neg_lo:[0,1,0] neg_hi:[0,1,0]")
            for k in range(G + 1, G + 7):
                T(f"v_pk_maximum3_f16 v245, v245, v{k}, v{k+1} neg_lo:[0,1,0] neg_hi:[0,1,0]")
            T(f"v_pk_maximum3_f16 v245, v245, v{G+7}, v245 neg_lo:[0,1,0] neg_hi:[0,1,0]")
            T(f"""
v_lshrrev_b32 v246, 3, v1
v_lshlrev_b32 v246, 2, v246
v_max_u16_sdwa v245, v245, v245 dst_sel:DWORD dst_unused:UNUSED_PAD src0_sel:WORD_0 src1_sel:WORD_1
s_lshl_b32 s57, s54, 5
s_add_u32 s57, s57, {EOK}
v_add_u32 v246, s57, v246
v_cmp_le_u32 vcc, 0x2800, v245
s_nop 1
v_cndmask_b32 v246, v17, v246, vcc
ds_write_b32 v246, v16
""")
    T("L_skip6:")
    for k in range(8):
        T(f"v_mov_b64 v[{vACC+16+2*k}:{vACC+17+2*k}], 0")
    for k in range(4):
        T(f"v_mov_b64 v[{vBP+8+2*k}:{vBP+9+2*k}], 0")
    T(f"""
s_add_u32 s60, s93, 1
s_mov_b32 s58, -1
s_mov_b32 s59, s94
v_mov_b32 v{vD+1}, 0xff800000
v_mov_b64 v[{vD+2}:{vD+3}], 0
v_cndmask_b32 v{vD}, 0, v{vD+1}, s[58:59]
v_mov_b32 v{vD+1}, 0
v_mov_b64 v[{vL}:{vL+1}], 0
s_waitcnt vmcnt(0) lgkmcnt(0)
s_barrier
""")
    stamp(True)
    pre, sl, post = loop_parts()
    o += emit(pre)
    A(".p2align 6")
    A("L_loop:")
    o += emit(sl[0])
    o += emit(sl[1])
    A("L_slot2:")
    o += emit(sl[2])
    o += emit(sl[3])
    o += emit(post)
    stamp(True)
    T(f"""
v_lshrrev_b32 v12, 4, v0
v_mul_u32_u24 v12, 17, v12
v_and_b32 v13, 15, v0
v_add_lshl_u32 v12, v12, v13, 3
ds_write_b64 v12, v[{vL}:{vN}] offset:{SCR}
v_and_b32 v13, 31, v1
v_mul_u32_u24 v13, 17, v13
v_lshrrev_b32 v14, 5, v1
s_lshl_b32 s57, s52, 1
v_add_u32 v14, s57, v14
v_add_lshl_u32 v13, v13, v14, 3
v_lshlrev_b32 v15, 2, v14
v_mov_b32 v19, 0
s_waitcnt lgkmcnt(0)
s_barrier
""")
    stamp()
    T(f"""
ds_read_b64 v[16:17], v13 offset:{SCR}
ds_read_b32 v18, v15 offset:{EOK}
ds_read_b64 v[20:21], v19 offset:{WOK}
s_lshl_b32 s57, s2, 4
v_add_u32 v14, s57, v14
v_lshlrev_b32 v14, 1, v14
s_waitcnt lgkmcnt(2)
""")
    dpps = ["quad_perm:[1,0,3,2]", "quad_perm:[2,3,0,1]", "row_half_mirror", "row_mirror"]
    for d in dpps:
        T(f"v_add_f32_dpp v16, v16, v16 {d} row_mask:0xf bank_mask:0xf\nv_add_f32_dpp v17, v17, v17 {d} row_mask:0xf bank_mask:0xf\ns_nop 0")
    T(f"""
v_mov_b32 v22, v16
v_mov_b32 v23, v17
s_nop 0
v_permlane16_swap_b32 v16, v22
v_permlane16_swap_b32 v17, v23
s_nop 0
v_add_f32 v16, v16, v22
v_add_f32 v17, v17, v23
v_rcp_f32 v22, v16
s_waitcnt lgkmcnt(0)
v_and_b32 v18, v18, v20
v_mul_f32 v17, v17, v22
v_and_b32 v18, v18, v21
v_cvt_pk_bf16_f32 v17, v17, v17
v_and_b32 v13, 31, v1
v_cmp_eq_u32 vcc, 0, v13
s_and_saveexec_b64 s[58:59], vcc
s_cbranch_execz L_end
buffer_store_short v17, v14, s[48:51], 0 offen
@DIAG@
L_end:
s_endpgm
L_pf_end:
""")
    if DIAG:
        ns = min(stamp_n[0], 9)
        d = [f"s_memtime s[{62+2*ns}:{63+2*ns}]", "s_memrealtime s[96:97]", "s_load_dwordx2 s[40:41], s[0:1], 80", "s_waitcnt lgkmcnt(0)",
             "s_mov_b64 exec, 1", "s_lshl_b32 s42, s2, 3", "s_add_u32 s42, s42, s52", "s_lshl_b32 s42, s42, 6", "v_mov_b32 v1, s42",
             "v_mov_b32 v2, s98", "global_store_dword v1, v2, s[40:41]", "v_mov_b32 v2, s96", "global_store_dword v1, v2, s[40:41] offset:4"]
        for k in range(1, ns + 1):
            d += [f"s_sub_u32 s42, s{62+2*k}, s62", "v_mov_b32 v2, s42", f"global_store_dword v1, v2, s[40:41] offset:{4+4*k}"]
        d += ["s_getreg_b32 s42, hwreg(HW_REG_HW_ID)", "v_mov_b32 v2, s42", "global_store_dword v1, v2, s[40:41] offset:56"]
        for k in range(rt_n[0]):
            d += [f"s_sub_u32 s42, s{16+2*k}, s98", "v_mov_b32 v2, s42", f"global_store_dword v1, v2, s[40:41] offset:{44+4*k}"]
        assert 62 + 2 * ns + 1 < 80
        txt = "\n".join("  " + x for x in d)
    else:
        txt = ""
    o[:] = [txt if l.strip() == "@DIAG@" else l for l in o]
    A(".p2align 6")
    A(".type L_tbl,@object")
    A("L_tbl:")
    for k in range(0, len(tbl), 16):
        A("  .long " + ", ".join(f"{x:#x}" for x in tbl[k:k + 16]))
    A('.section .rodata,"a"')
    A(".p2align 6")
    A(f".amdhsa_kernel {KNAME}")
    A("""  .amdhsa_next_free_vgpr 256
  .amdhsa_next_free_sgpr 102
  .amdhsa_accum_offset 256
  .amdhsa_group_segment_fixed_size 0
  .amdhsa_kernarg_size 88
  .amdhsa_user_sgpr_count 2
  .amdhsa_user_sgpr_kernarg_segment_ptr 1
  .amdhsa_system_sgpr_workgroup_id_x 1
.end_amdhsa_kernel""")
    return "\n".join(o) + "\n"


if __name__ == "__main__":
    for a in list(sys.argv):
        if a.startswith("--plan="):
            PLAN = a[7:]
            sys.argv.remove(a)
    if "--diag" in sys.argv:
        DIAG = 1
        sys.argv.remove("--diag")
    if "--diag2" in sys.argv:
        DIAG = 2
        sys.argv.remove("--diag2")
    out = sys.argv[1] if len(sys.argv) > 1 else "standalone__factorization_afm__recsys.s"
    open(out, "w").write(gen())
    print("wrote", out)
```

```python
import sys, struct
from asmkit import I, vr, auto_waits, check_hazards, emit
import sched2

KNAME = "standalone__factorization_afm__recsys_kernel"

FS = 2176
PS = 272
CELL = 0
EOK = CELL + 64
WOK = CELL + 128
POK = CELL + 132
TRASH = CELL + 136
HS = 256
BS = 512
U16 = 768
P16 = 896
H16 = 1024
WOFF = 2048
WRS = 192
E16 = WOFF + 64 * WRS
LDS_TOTAL = E16 + 26 * FS
SCR = WOFF

vW, vBIAS, vLINA, vEOP, vX, vACC = 128, 160, 176, 192, 208, 224
vBP = 112
vCEN = [64, 72, 80, 88]
vSTR = [96, 104]
vD, vIDX = 44, 43
vaS = [40, 41]
vLANE = 42
vE, vS = 36, 37
vL, vN = 34, 35
vWt = 33

LOG2E = 1.4426950408889634
HC = 0.5 * LOG2E
DIAG = False


def f32bits(x):
    return struct.unpack("<I", struct.pack("<f", x))[0]


def build_tables():
    W = sched2.schedule()
    sched2.check(W)
    data = []
    for r0, r1 in W:
        pk = lambda a, b: (a * FS) | ((b * FS) << 16)
        ent = [pk(2 * r0[0], 2 * r1[0]), pk(2 * r0[0] + 1, 2 * r1[0] + 1)]
        L = len(r0[2])
        for k in range(11):
            kk = min(k, L - 1)
            ent.append(pk(r0[2][kk], r1[2][kk]))
        ent.append(L)
        ent.append((0 if r0[1] else 0x0000ffff) | (0 if r1[1] else 0xffff0000))
        ent.append(0)
        assert len(ent) == 16
        data += ent
    return data


def mfma(par, mt, k):
    acc = vACC + 16 * par + 4 * mt
    a = vW + (mt * 2 + k) * 4
    b = vBP + 8 * par + 4 * k
    c = (vBIAS + 4 * mt) if k == 0 else acc
    return I(f"v_mfma_f32_16x16x32_f16 {vr(acc,4)}, {vr(a,4)}, {vr(b,4)}, {vr(c,4)}", "mfma4",
             rd=list(range(a, a + 4)) + list(range(b, b + 4)), wr=range(acc, acc + 4), srcc=range(c, c + 4))


def smf(a, b):
    return I(f"v_smfmac_f32_16x16x64_f16 {vr(vD,4)}, {vr(a,4)}, {vr(b,8)}, v{vIDX}", "mfma4",
             rd=list(range(a, a + 4)) + list(range(b, b + 8)) + [vIDX], wr=range(vD, vD + 4), srcc=range(vD, vD + 4))


def prod(tau, i):
    d = vBP + 8 * (tau & 1) + i
    h = vCEN[tau] + i
    s = vSTR[tau & 1] + i
    return I(f"v_pk_mul_f16 v{d}, v{h}, v{s}", "valu", rd=[h, s], wr=[d])


def cvt(par, i):
    x = vACC + 16 * par + 2 * i
    return I(f"v_cvt_pk_f16_f32 v{vX+i}, |v{x}|, |v{x+1}|", "valu", rd=[x, x + 1], wr=[vX + i])


def ldc(dst, addr, c):
    return I(f"ds_read_b128 {vr(dst+4*c,4)}, v{addr} offset:{c*PS}", "dsr", rd=[addr], wr=range(dst + 4 * c, dst + 4 * c + 4))


def V(text, rd, wr, kind="valu"):
    return I(text, kind, rd=rd, wr=wr)


def S_(text):
    return I(text, "salu")


def fin_parts():
    return dict(
        e=V(f"v_add_f32 v{vE}, v{vD}, v{vD+2}", [vD, vD + 2], [vE]),
        s=V(f"v_add_f32 v{vS}, v{vD+1}, v{vD+3}", [vD + 1, vD + 3], [vS]),
        z0=V(f"v_mov_b64 {vr(vD,2)}, 0", [], [vD, vD + 1]),
        z1=V(f"v_mov_b64 {vr(vD+2,2)}, 0", [], [vD + 2, vD + 3]),
        x=V(f"v_exp_f32 v{vWt}, v{vE}", [vE], [vWt], "trans"),
        l=V(f"v_add_f32 v{vL}, v{vL}, v{vWt}", [vL, vWt], [vL]),
        n=V(f"v_fma_f32 v{vN}, v{vWt}, v{vS}, v{vN}", [vWt, vS, vN], [vN]))


PLAN = "c"
PRIO = 3


def slot(tau):
    par = tau & 1
    prev = (tau + 3) % 4
    nxt = (tau + 1) % 4
    M = lambda mt, k: mfma(par, mt, k)
    C = [cvt(1 - par, i) for i in range(8)]
    P = [prod(nxt, i) for i in range(8)]
    if PLAN != "a":
        P[0].rd |= set(range(vSTR[nxt & 1], vSTR[nxt & 1] + 8))
    SL = smf(vLINA + 4 * prev, vBP + 8 * (1 - par))
    SE = smf(vEOP + 4 * prev, vX)
    F = fin_parts()
    t0 = lambda x: x if tau == 0 else []
    t1 = lambda x: x if tau == 1 else []
    mov = [S_("s_movrels_b32 s57, s83"), S_("s_add_u32 m0, m0, 1")]
    spl = [S_("s_and_b32 s58, s57, 0xffff"), S_("s_lshr_b32 s59, s57, 16")]
    adr = [V(f"v_add_u32 v{vaS[0]}, s58, v{vLANE}", [vLANE], [vaS[0]]), V(f"v_add_u32 v{vaS[1]}, s59, v{vLANE}", [vLANE], [vaS[1]])]
    lds = []
    if tau == 1:
        lds = [ldc(vSTR[0], vaS[0], 0), ldc(vSTR[0], vaS[0], 1)]
    if tau == 2:
        lds = [ldc(vSTR[1], vaS[1], 0), ldc(vSTR[1], vaS[1], 1)]
    if PLAN in ("a", "b"):
        L = [M(0, 0)] + t1([F["x"]]) + [SL, C[0], C[1], M(0, 1), C[2], C[3]] + t0(mov)
        L += [M(1, 0), C[4], C[5]] + t0(spl) + [M(1, 1), C[6], C[7]] + t1([F["l"], F["n"]])
        L += [M(2, 0), P[0], SE, P[1], M(2, 1), P[2], P[3]] + t0(adr)
        L += [M(3, 0), P[4], P[5], M(3, 1), P[6], P[7]] + t0([F["e"], F["s"], F["z0"], F["z1"]]) + lds
        return L
    if PLAN == "c":
        L = [M(0, 0), C[0], C[1]] + t1([F["x"]]) + [SL] + t0(mov) + t1([F["l"]]) + [M(0, 1), C[2], C[3]]
        L += [M(1, 0), C[4], C[5]] + t0(spl) + [M(1, 1), C[6], C[7]]
        L += [M(2, 0), P[0], P[1], SE] + t0(adr) + t1([F["n"]]) + [M(2, 1), P[2], P[3]]
        L += [M(3, 0), P[4], P[5], M(3, 1), P[6], P[7]] + t0([S_("s_nop 0"), F["e"], F["s"], F["z0"], F["z1"]]) + lds
        return L
    if PLAN == "d":
        L = [M(0, 0)] + t1([F["x"]]) + [SL, C[0], M(0, 1), C[1], C[2], M(1, 0), C[3], C[4]] + t0(mov)
        L += [M(1, 1), C[5], C[6]] + t0(spl) + [M(2, 0), C[7], P[0]] + t1([F["l"]])
        L += [M(2, 1), P[1], P[2], SE, P[3]] + t0(adr) + t1([F["n"]])
        L += [M(3, 0), P[4], P[5], M(3, 1), P[6], P[7]] + t0([S_("s_nop 2"), F["e"], F["s"], F["z0"], F["z1"]]) + lds
        return L
    raise SystemExit("plan")


def flags():
    G = 48
    mx = lambda d, a, b, c: V(f"v_pk_maximum3_f16 v{d}, v{a}, v{b}, v{c} neg_lo:[0,1,0] neg_hi:[0,1,0]", [a, b, c], [d])
    L = [mx(238, G, G, G + 1), mx(237, 232, 232, 233)]
    for k in range(G + 1, G + 7):
        L.append(mx(238, 238, k, k + 1))
        if k - G <= 2:
            L.append(mx(237, 237, 232 + k - G, 233 + k - G))
    L += [mx(238, 238, G + 7, 238), mx(237, 237, 235, 237)]
    L += [V("v_and_b32 v15, 0x7fff, v15", [15], [15]),
          V("v_lshrrev_b32 v239, 3, v1", [1], [239]), V("v_lshlrev_b32 v239, 2, v239", [239], [239]),
          V("v_max_u16_sdwa v238, v238, v238 dst_sel:DWORD dst_unused:UNUSED_PAD src0_sel:WORD_0 src1_sel:WORD_1", [238], [238]),
          V("v_max_u16_sdwa v237, v237, v237 dst_sel:DWORD dst_unused:UNUSED_PAD src0_sel:WORD_0 src1_sel:WORD_1", [237], [237]),
          S_("s_lshl_b32 s57, s54, 5"), S_(f"s_add_u32 s57, s57, {EOK}"),
          V("v_add_u32 v239, s57, v239", [239], [239]),
          V("v_mov_b32 v16, 1", [], [16]), V(f"v_mov_b32 v17, {TRASH}", [], [17]),
          V("v_cmp_le_u32 vcc, 0x2800, v238", [238], []), V(f"v_mov_b32 v18, {WOK}", [], [18]), V("v_mov_b32 v19, s44", [], [19]),
          V("v_cndmask_b32 v239, v17, v239, vcc", [17, 239], [239]),
          V("v_cmp_le_u32 vcc, 0x1c00, v237", [237], []), S_("s_nop 1"),
          V("v_cndmask_b32 v18, v17, v18, vcc", [17, 18], [18]),
          V("v_cmp_le_u32 vcc, 0x2400, v15", [15], []),
          I("ds_write_b32 v239, v16", "dsw", rd=[239, 16]), I("ds_write_b32 v18, v16", "dsw", rd=[18, 16]),
          V("v_cndmask_b32 v19, v17, v19, vcc", [17, 19], [19]),
          I("ds_write_b32 v19, v16", "dsw", rd=[19, 16])]
    return L


def loop_parts():
    sl = [slot(t) for t in range(4)]
    pre = []
    for reg, ad in ((vCEN[0], 96), (vCEN[2], 98), (vCEN[1], 97), (vCEN[3], 99), (vSTR[1], 97)):
        pre += [ldc(reg, ad, 0), ldc(reg, ad, 1)]
    pre += [ldc(vSTR[0], vaS[0], 0), ldc(vSTR[0], vaS[0], 1)]
    pre += flags()
    for i in range(8):
        pre.append(V(f"v_pk_mul_f16 v{vBP+i}, v{vCEN[2]+i}, v{vCEN[0]+i}", [vCEN[2] + i, vCEN[0] + i], [vBP + i]))
    br0 = S_("s_branch L_slot2")
    br0.fixed = 5
    pre.append(br0)
    ctl = [S_("s_sub_u32 s60, s60, 1"), S_("s_cmp_lg_u32 s60, 0")]
    if PRIO:
        ctl = [S_("s_sub_u32 s60, s60, 1"), S_(f"s_cmp_lg_u32 s60, {PRIO}"), S_("s_cbranch_scc1 L_keep"), S_("s_setprio 0"), S_("L_keep:"), S_("s_cmp_lg_u32 s60, 0")]
    s3 = sl[3]
    s3 = s3[:-4] + ctl + s3[-4:] + [S_("s_cbranch_scc1 L_loop")]
    sl[3] = s3
    F = fin_parts()
    C = [cvt(1, i) for i in range(8)]
    post = [smf(vLINA + 12, vBP + 8), S_("s_nop 4")] + C + [S_("s_nop 0"), S_("s_nop 0"), smf(vEOP + 12, vX), S_("s_nop 7"),
            F["e"], F["s"], F["x"], S_("s_nop 0"), F["l"], F["n"]]
    body = sl[0] + sl[1] + sl[2] + sl[3]
    auto_waits(pre + sl[2] + sl[3], body, post, nsim=3)
    errs = []
    for trips in (1, 2, 3):
        errs += check_hazards(pre + sl[2] + sl[3] + body * trips + post, f"trips{trips}")
    errs = sorted(set(errs))
    if errs:
        print("\n".join(errs), file=sys.stderr)
        raise SystemExit("hazards")
    return pre, sl, post


def gen():
    tbl = build_tables()
    o = []
    A = o.append
    with open("standalone__factorization_afm__recsys.s.ref") as f:
        for line in f:
            if line.startswith("; @launch"):
                break
            if line.startswith("; Override") or line.startswith("; grid="):
                continue
            A(line.rstrip())
    A(f"; @launch grid=(256,1,1) block=(512,1,1) lds={LDS_TOTAL}")
    A('.amdgcn_target "amdgcn-amd-amdhsa--gfx950"')
    A(".text")
    A(f".globl {KNAME}")
    A(".p2align 8")
    A(f".type {KNAME},@function")
    A(f"{KNAME}:")

    def T(s):
        for l in s.strip("\n").split("\n"):
            l = l.strip()
            if l:
                A(l if l.endswith(":") else "  " + l)

    stamp_n = [0]

    rt_n = [0]
    def stamp(rt=False):
        if DIAG:
            k = stamp_n[0]
            stamp_n[0] += 1
            T(f"s_memtime s[{62+2*k}:{63+2*k}]") if k < 9 else None
            if rt and DIAG == 2:
                T(f"s_memrealtime s[{16+2*rt_n[0]}:{17+2*rt_n[0]}]")
                rt_n[0] += 1

    if DIAG:
        T("s_memrealtime s[98:99]")
    stamp()
    T16 = 1152
    T32 = 1280
    T(f"""
s_cmp_ge_u32 s2, 256
s_cbranch_scc1 L_end
s_load_dwordx2 s[24:25], s[0:1], 0
s_load_dwordx2 s[28:29], s[0:1], 8
s_load_dwordx8 s[8:15], s[0:1], 32
s_load_dwordx2 s[48:49], s[0:1], 64
s_getpc_b64 s[22:23]
L_pc:
v_lshrrev_b32 v2, 6, v0
v_and_b32 v1, 63, v0
v_and_b32 v3, 15, v0
v_readfirstlane_b32 s52, v2
v_lshl_add_u32 v3, v2, 4, v3
v_lshlrev_b32 v3, 7, v3
v_min_u32 v3, L_pf_end-L_pc-4, v3
s_lshl_b32 s53, s52, 6
s_add_u32 s53, s53, L_tbl-L_pc
global_load_dword v5, v3, s[22:23]
s_load_dwordx16 s[80:95], s[22:23], s53
s_lshr_b32 s53, s52, 1
s_and_b32 s54, s52, 1
s_mul_i32 s55, s53, 28
s_cmp_eq_u32 s53, 3
s_cselect_b32 s56, 4, 0
s_sub_u32 s55, s55, s56
s_mul_i32 s56, s2, 1664
s_add_u32 s55, s55, s56
s_mul_i32 s56, s54, 832
s_add_u32 s56, s55, s56
v_lshrrev_b32 v6, 3, v1
v_mul_u32_u24 v24, 104, v6
v_and_b32 v7, 7, v1
v_lshlrev_b32 v25, 4, v7
v_lshlrev_b32 v28, 7, v7
s_mov_b32 s26, 425984
s_mov_b32 s27, 0x20000
s_mov_b32 s30, 128000
s_mov_b32 s31, 0x20000
s_mov_b32 s50, 8192
s_mov_b32 s51, 0x20000
s_lshr_b32 s57, s2, 3
s_and_b32 s57, s57, 15
s_lshl_b32 s57, s57, 3
s_add_u32 s57, s57, s52
s_lshl_b32 s57, s57, 10
s_waitcnt lgkmcnt(0)
buffer_load_dwordx4 v[8:11], v24, s[24:27], s56 offen
buffer_load_dwordx3 v[12:14], v24, s[24:27], s56 offen offset:16
buffer_load_dword v5, v28, s[28:31], s57 offen
""")
    T(f"""
s_and_b32 s18, s52, 3
s_mov_b32 s20, {T16}
s_mov_b32 s44, {TRASH}
s_mov_b32 s21, {T32}
s_cmp_eq_u32 s18, 1
s_cselect_b32 s16, s12, s10
s_cselect_b32 s17, s13, s11
s_cselect_b32 s19, {f32bits(HC):#x}, 1.0
s_cselect_b32 s20, {H16}, s20
s_cselect_b32 s45, 1, 0
s_cmp_eq_u32 s18, 2
s_cselect_b32 s16, s14, s16
s_cselect_b32 s17, s15, s17
s_cselect_b32 s20, {P16}, s20
s_cselect_b32 s44, {POK}, s44
s_cmp_eq_u32 s18, 0
s_cselect_b32 s21, {BS}, s21
s_cmp_eq_u32 s18, 3
s_cselect_b32 s21, {BS}, s21
v_lshlrev_b32 v26, 4, v0
v_lshlrev_b32 v27, 1, v1
""")
    def perm(dst, src, lin, t0, t1):
        T(f"""
v_lshrrev_b32 v{t0}, 5, v{src}
v_bfe_u32 v{t1}, v{src}, 3, 1
v_lshl_add_u32 v{dst}, v{t0}, 1, v{t1}
v_bfe_u32 v{t1}, v{src}, 1, 1
v_lshl_add_u32 v{dst}, v{dst}, 1, v{t1}
v_bfe_u32 v{t0}, v{src}, {4 if lin else 2}, 1
v_bfe_u32 v{t1}, v{src}, {2 if lin else 4}, 1
v_lshl_add_u32 v{t1}, v{t0}, 1, v{t1}
v_lshl_add_u32 v{dst}, v{dst}, 2, v{t1}
v_and_b32 v{t1}, 1, v{src}
v_lshl_add_u32 v{dst}, v{dst}, 1, v{t1}
v_lshlrev_b32 v{dst}, 1, v{dst}
""")
    perm(33, 1, True, 2, 3)
    perm(34, 1, False, 2, 3)
    T(f"""
v_lshrrev_b32 v29, 3, v0
s_cmp_lg_u32 s45, 0
s_cselect_b64 s[46:47], -1, 0
v_cndmask_b32 v33, v33, v34, s[46:47]
v_add_u32 v33, s20, v33
""")
    perm(31, 29, True, 2, 3)
    T(f"""
global_load_dwordx4 v[16:19], v26, s[8:9]
global_load_dwordx4 v[20:23], v25, s[12:13]
global_load_ushort v15, v27, s[16:17]
s_mul_i32 s57, s53, {FS}
s_lshl_b32 s58, s54, 7
s_add_u32 s57, s57, s58
s_add_u32 s57, s57, {E16}
v_mul_u32_u24 v30, {PS}, v7
v_lshl_add_u32 v30, v6, 4, v30
v_add_u32 v30, s57, v30
v_mul_u32_u24 v29, {WRS}, v29
v_add_u32 v29, v29, v25
v_lshlrev_b32 v32, 2, v1
v_mov_b32 v35, 0
ds_write_b32 v32, v35 offset:{CELL}
v_add_u32 v32, s21, v32
""")
    for k in range(8):
        T(f"v_mov_b64 v[{vACC+16+2*k}:{vACC+17+2*k}], 0")
    for k in range(4):
        T(f"v_mov_b64 v[{vBP+8+2*k}:{vBP+9+2*k}], 0")
    for k in range(16):
        T(f"v_mov_b64 v[{vLINA+2*k}:{vLINA+1+2*k}], 0")
    T(f"""
v_lshrrev_b32 v3, 4, v1
v_and_b32 v4, 15, v1
v_lshrrev_b32 v36, 2, v4
v_lshl_add_u32 v36, v3, 4, v36
v_mul_u32_u24 v36, {WRS}, v36
v_and_b32 v2, 3, v1
v_lshl_add_u32 v36, v2, 3, v36
v_lshlrev_b32 v37, 4, v3
v_bfe_u32 v2, v1, 4, 1
v_lshrrev_b32 v6, 5, v1
v_bfe_u32 v7, v1, 1, 1
v_lshl_add_u32 v38, v2, 1, v6
v_lshl_add_u32 v38, v38, 1, v7
v_lshlrev_b32 v38, 4, v38
v_lshl_add_u32 v39, v6, 1, v2
v_lshl_add_u32 v39, v39, 1, v7
v_lshlrev_b32 v39, 4, v39
v_add_u32 v39, {H16}, v39
s_mov_b32 s32, 0xaaaaaaaa
s_mov_b32 s33, 0xaaaaaaaa
s_mov_b32 s34, 0xcccccccc
s_mov_b32 s35, 0xcccccccc
v_mov_b32 v2, {U16}
v_mov_b32 v6, {P16}
v_cndmask_b32 v2, v2, v6, s[32:33]
v_add_u32 v38, v38, v2
v_mov_b32 v2, 0x44444444
v_mov_b32 v6, 0xeeeeeeee
v_cndmask_b32 v{vIDX}, v2, v6, s[34:35]
v_mul_u32_u24 v{vLANE}, {2*PS}, v3
v_lshl_add_u32 v{vLANE}, v4, 4, v{vLANE}
v_add_u32 v{vLANE}, {E16}, v{vLANE}
s_and_b32 s57, s80, 0xffff
s_lshr_b32 s58, s80, 16
v_add_u32 v96, s57, v{vLANE}
v_add_u32 v97, s58, v{vLANE}
s_and_b32 s57, s81, 0xffff
s_lshr_b32 s58, s81, 16
v_add_u32 v98, s57, v{vLANE}
v_add_u32 v99, s58, v{vLANE}
s_and_b32 s57, s82, 0xffff
s_lshr_b32 s58, s82, 16
v_add_u32 v{vaS[0]}, s57, v{vLANE}
v_add_u32 v{vaS[1]}, s58, v{vLANE}
s_mov_b32 m0, 0
s_add_u32 s60, s93, 1
s_mov_b32 s58, -1
s_mov_b32 s59, s94
v_mov_b32 v{vD+1}, 0xff800000
v_mov_b64 v[{vD+2}:{vD+3}], 0
v_cndmask_b32 v{vD}, 0, v{vD+1}, s[58:59]
v_mov_b32 v{vD+1}, 0
s_waitcnt vmcnt(4)
""")
    stamp()
    G = 48
    for t in range(7):
        T(f"v_lshl_add_u32 v{8+t}, v{8+t}, 7, v25")
        T(f"buffer_load_dwordx4 v[{G+4*t}:{G+4*t+3}], v{8+t}, s[28:31], 0 offen")
    T("s_waitcnt vmcnt(7)")
    T("v_dot2_f32_bf16 v236, v16, v20, 0")
    for i in range(4):
        T(f"v_lshlrev_b32 v{224+2*i}, 16, v{16+i}\nv_and_b32 v{225+2*i}, 0xffff0000, v{16+i}")
        if i < 3:
            T(f"v_dot2_f32_bf16 v236, v{17+i}, v{21+i}, v236")
    T("v_lshlrev_b32 v15, 16, v15")
    for i in range(4):
        T(f"v_cvt_pk_f16_f32 v{232+i}, v{224+2*i}, v{225+2*i}")
    T(f"""
v_add_f32_dpp v236, v236, v236 quad_perm:[1,0,3,2] row_mask:0xf bank_mask:0xf
ds_write_b128 v29, v[232:235] offset:{WOFF}
ds_write_b32 v32, v15
v_add_f32_dpp v236, v236, v236 quad_perm:[2,3,0,1] row_mask:0xf bank_mask:0xf
v_mul_f32 v15, s19, v15
s_nop 0
v_add_f32_dpp v236, v236, v236 row_half_mirror row_mask:0xf bank_mask:0xf
v_cvt_f16_f32 v15, v15
v_mul_f32 v236, {f32bits(HC):#x}, v236
ds_write_b16 v33, v15
v_cvt_f16_f32 v236, v236
ds_write_b16 v31, v236 offset:{U16}
s_waitcnt lgkmcnt(0)
s_barrier
""")
    stamp()
    for mt in range(4):
        for k in range(2):
            for hf in range(2):
                r = vW + (mt * 2 + k) * 4 + 2 * hf
                T(f"ds_read_b64_tr_b16 v[{r}:{r+1}], v36 offset:{WOFF + (8*k+4*hf)*WRS + mt*32}")
    for mt in range(4):
        r = vBIAS + 4 * mt
        T(f"ds_read_b128 v[{r}:{r+3}], v37 offset:{BS + 64*mt}")
    for tau in range(4):
        ml = (0xF << (4 * tau)) * 0x10001
        T(f"s_mov_b32 exec_lo, {ml:#x}\ns_mov_b32 exec_hi, {ml:#x}")
        T(f"ds_read_b128 v[{vLINA+4*tau}:{vLINA+4*tau+3}], v38")
        me = ml & 0x55555555
        T(f"s_mov_b32 exec_lo, {me:#x}\ns_mov_b32 exec_hi, {me:#x}")
        T(f"ds_read_b128 v[{vEOP+4*tau}:{vEOP+4*tau+3}], v39")
    T("s_mov_b64 exec, -1")

    def conv(t):
        g = G + 4 * t
        T(f"s_waitcnt vmcnt({6-t})")
        for i in range(4):
            T(f"v_lshlrev_b32 v{224+2*i}, 16, v{g+i}\nv_and_b32 v{225+2*i}, 0xffff0000, v{g+i}")
        for i in range(4):
            T(f"v_cvt_pk_f16_f32 v{g+i}, v{224+2*i}, v{225+2*i}")
        T(f"ds_write_b128 v30, v[{g}:{g+3}] offset:{t*4*FS}")
    for t in range(4):
        conv(t)
    stamp()
    conv(4); conv(5)
    T("s_cmp_ge_u32 s53, 2\ns_cbranch_scc1 L_skip6")
    conv(6)
    T("L_skip6:")
    T(f"v_mov_b64 v[{vL}:{vL+1}], 0")
    if PRIO:
        T("s_cmp_lt_u32 s52, 4\ns_cbranch_scc1 L_noprio\ns_setprio 1\nL_noprio:")
    T("""
s_waitcnt vmcnt(0) lgkmcnt(0)
s_barrier
""")
    stamp(True)
    pre, sl, post = loop_parts()
    o += emit(pre)
    A(".p2align 6")
    A("L_loop:")
    o += emit(sl[0])
    o += emit(sl[1])
    A("L_slot2:")
    o += emit(sl[2])
    o += emit(sl[3])
    o += emit(post)
    stamp(True)
    T(f"""
v_lshrrev_b32 v12, 4, v0
v_mul_u32_u24 v12, 17, v12
v_and_b32 v13, 15, v0
v_add_lshl_u32 v12, v12, v13, 3
ds_write_b64 v12, v[{vL}:{vN}] offset:{SCR}
v_and_b32 v13, 31, v1
v_mul_u32_u24 v13, 17, v13
v_lshrrev_b32 v14, 5, v1
s_lshl_b32 s57, s52, 1
v_add_u32 v14, s57, v14
v_add_lshl_u32 v13, v13, v14, 3
v_lshlrev_b32 v15, 2, v14
v_mov_b32 v19, 0
s_waitcnt lgkmcnt(0)
s_barrier
""")
    stamp()
    T(f"""
ds_read_b64 v[16:17], v13 offset:{SCR}
ds_read_b32 v18, v15 offset:{EOK}
ds_read_b64 v[20:21], v19 offset:{WOK}
s_lshl_b32 s57, s2, 4
v_add_u32 v14, s57, v14
v_lshlrev_b32 v14, 1, v14
s_waitcnt lgkmcnt(2)
""")
    dpps = ["quad_perm:[1,0,3,2]", "quad_perm:[2,3,0,1]", "row_half_mirror", "row_mirror"]
    for d in dpps:
        T(f"v_add_f32_dpp v16, v16, v16 {d} row_mask:0xf bank_mask:0xf\nv_add_f32_dpp v17, v17, v17 {d} row_mask:0xf bank_mask:0xf\ns_nop 0")
    T(f"""
v_mov_b32 v22, v16
v_mov_b32 v23, v17
s_nop 0
v_permlane16_swap_b32 v16, v22
v_permlane16_swap_b32 v17, v23
s_nop 0
v_add_f32 v16, v16, v22
v_add_f32 v17, v17, v23
v_rcp_f32 v22, v16
v_and_b32 v13, 31, v1
v_mul_f32 v17, v17, v22
v_cmp_eq_u32 vcc, 0, v13
v_cvt_pk_bf16_f32 v24, v17, v17
s_and_saveexec_b64 s[58:59], vcc
buffer_store_short v24, v14, s[48:51], 0 offen
s_waitcnt lgkmcnt(0)
v_and_b32 v18, v18, v20
v_mov_b32 v22, 0x1f800000
v_mov_b32 v23, 0x71800000
v_and_b32 v18, v18, v21
v_mov_b32 v25, 0x207
v_med3_f32 v22, v16, v22, v23
v_cmp_eq_u32 s[44:45], 0, v18
v_cmp_class_f32 s[46:47], v17, v25
v_cmp_neq_f32 vcc, v22, v16
@DIAG@
s_or_b64 s[44:45], s[44:45], s[46:47]
s_or_b64 s[44:45], s[44:45], vcc
s_and_b64 s[44:45], s[44:45], exec
s_cbranch_scc1 L_slow
L_end:
s_endpgm
L_pf_end:
""")
    T(f"""
L_slow:
s_mov_b64 exec, -1
v_lshlrev_b32 v2, 1, v1
v_add_u32 v3, 4096, v2
""")
    for d in range(64):
        T(f"global_load_ushort v{128+d}, v{2 if d < 32 else 3}, s[8:9] offset:{(d % 32) * 128}")
    T(f"""
global_load_ushort v100, v2, s[10:11]
global_load_ushort v101, v2, s[12:13]
global_load_ushort v102, v2, s[14:15]
s_mul_i32 s36, s52, 6656
s_add_u32 s36, s36, {E16}
v_lshlrev_b32 v4, 2, v1
v_add_u32 v4, s36, v4
s_waitcnt vmcnt(0)
""")
    for d in range(64):
        T(f"v_lshlrev_b32 v{128+d}, 16, v{128+d}")
    T("""
v_lshlrev_b32 v100, 16, v100
v_lshlrev_b32 v101, 16, v101
v_lshlrev_b32 v102, 16, v102
s_mov_b32 s37, 0
L_slow_b:
s_cmp_eq_u32 s37, 0
s_cselect_b32 s38, s44, s45
s_cmp_eq_u32 s38, 0
s_cbranch_scc1 L_slow_next
s_lshl_b32 s39, s2, 4
s_lshl_b32 s40, s52, 1
s_add_u32 s39, s39, s40
s_add_u32 s39, s39, s37
s_mul_i32 s40, s39, 104
v_lshlrev_b32 v5, 2, v1
buffer_load_dword v6, v5, s[24:27], s40 offen
s_mov_b32 s41, 0
v_mov_b32 v7, v4
s_waitcnt vmcnt(0)
L_slow_rows:
v_readlane_b32 s42, v6, s41
s_nop 3
s_lshl_b32 s42, s42, 7
buffer_load_ushort v8, v2, s[28:31], s42 offen
s_waitcnt vmcnt(0)
v_lshlrev_b32 v8, 16, v8
ds_write_b32 v7, v8
v_add_u32 v7, 256, v7
s_add_u32 s41, s41, 1
s_cmp_lt_u32 s41, 26
s_cbranch_scc1 L_slow_rows
v_mov_b32 v110, 0xff800000
v_mov_b32 v111, 0
v_mov_b32 v112, 0
s_mov_b32 s41, 0
s_waitcnt lgkmcnt(0)
L_slow_i:
s_lshl_b32 s42, s41, 8
v_add_u32 v7, s42, v4
ds_read_b32 v103, v7
s_add_u32 s43, s41, 1
L_slow_j:
s_lshl_b32 s42, s43, 8
v_add_u32 v7, s42, v4
ds_read_b32 v104, v7
s_waitcnt lgkmcnt(0)
v_mul_f32 v105, v103, v104
v_cvt_pk_bf16_f32 v105, v105, v105
v_lshlrev_b32 v105, 16, v105
v_mov_b32 v106, v100
v_mul_f32 v107, v105, v102
""")
    for g in range(8):
        for k in range(8):
            T(f"v_readlane_b32 s{64+k}, v105, {8*g+k}")
        for k in range(8):
            T(f"v_fma_f32 v106, s{64+k}, v{128+8*g+k}, v106")
    T("v_max_f32 v106, 0, v106\nv_mul_f32 v106, v106, v101\ns_nop 1")
    for dd in ["quad_perm:[1,0,3,2]", "quad_perm:[2,3,0,1]", "row_half_mirror", "row_mirror"]:
        T(f"v_add_f32_dpp v106, v106, v106 {dd} row_mask:0xf bank_mask:0xf\nv_add_f32_dpp v107, v107, v107 {dd} row_mask:0xf bank_mask:0xf\ns_nop 0")
    for sw in ("v_permlane16_swap_b32", "v_permlane32_swap_b32"):
        T(f"""
v_mov_b32 v108, v106
v_mov_b32 v109, v107
s_nop 1
{sw} v106, v108
{sw} v107, v109
s_nop 1
v_add_f32 v106, v106, v108
v_add_f32 v107, v107, v109
""")
    T(f"""
v_mul_f32 v106, {f32bits(LOG2E):#x}, v106
v_max_f32 v108, v110, v106
v_sub_f32 v109, v110, v108
v_sub_f32 v106, v106, v108
v_exp_f32 v109, v109
v_exp_f32 v106, v106
v_mov_b32 v110, v108
s_nop 0
v_mul_f32 v111, v111, v109
v_mul_f32 v112, v112, v109
v_add_f32 v111, v111, v106
v_fma_f32 v112, v106, v107, v112
s_add_u32 s43, s43, 1
s_cmp_lt_u32 s43, 26
s_cbranch_scc1 L_slow_j
s_add_u32 s41, s41, 1
s_cmp_lt_u32 s41, 25
s_cbranch_scc1 L_slow_i
v_rcp_f32 v111, v111
s_lshl_b32 s39, s39, 1
v_mov_b32 v7, s39
v_mul_f32 v112, v112, v111
v_cvt_pk_bf16_f32 v112, v112, v112
s_waitcnt vmcnt(0)
s_mov_b64 exec, 1
buffer_store_short v112, v7, s[48:51], 0 offen
s_mov_b64 exec, -1
L_slow_next:
s_add_u32 s37, s37, 1
s_cmp_lt_u32 s37, 2
s_cbranch_scc1 L_slow_b
s_endpgm
""")
    if DIAG:
        ns = min(stamp_n[0], 9)
        d = [f"s_memtime s[{62+2*ns}:{63+2*ns}]", "s_memrealtime s[96:97]", "s_load_dwordx2 s[40:41], s[0:1], 80", "s_waitcnt lgkmcnt(0)",
             "s_mov_b64 exec, 1", "s_lshl_b32 s42, s2, 3", "s_add_u32 s42, s42, s52", "s_lshl_b32 s42, s42, 6", "v_mov_b32 v1, s42",
             "v_mov_b32 v2, s98", "global_store_dword v1, v2, s[40:41]", "v_mov_b32 v2, s96", "global_store_dword v1, v2, s[40:41] offset:4"]
        for k in range(1, ns + 1):
            d += [f"s_sub_u32 s42, s{62+2*k}, s62", "v_mov_b32 v2, s42", f"global_store_dword v1, v2, s[40:41] offset:{4+4*k}"]
        d += ["s_getreg_b32 s42, hwreg(HW_REG_HW_ID)", "v_mov_b32 v2, s42", "global_store_dword v1, v2, s[40:41] offset:56"]
        for k in range(rt_n[0]):
            d += [f"s_sub_u32 s42, s{16+2*k}, s98", "v_mov_b32 v2, s42", f"global_store_dword v1, v2, s[40:41] offset:{44+4*k}"]
        assert 62 + 2 * ns + 1 < 80
        txt = "\n".join("  " + x for x in d)
    else:
        txt = ""
    o[:] = [txt if l.strip() == "@DIAG@" else l for l in o]
    A(".p2align 6")
    A(".type L_tbl,@object")
    A("L_tbl:")
    for k in range(0, len(tbl), 16):
        A("  .long " + ", ".join(f"{x:#x}" for x in tbl[k:k + 16]))
    A('.section .rodata,"a"')
    A(".p2align 6")
    A(f".amdhsa_kernel {KNAME}")
    A("""  .amdhsa_next_free_vgpr 256
  .amdhsa_next_free_sgpr 102
  .amdhsa_accum_offset 256
  .amdhsa_group_segment_fixed_size 0
  .amdhsa_kernarg_size 88
  .amdhsa_user_sgpr_count 2
  .amdhsa_user_sgpr_kernarg_segment_ptr 1
  .amdhsa_system_sgpr_workgroup_id_x 1
.end_amdhsa_kernel""")
    return "\n".join(o) + "\n"


if __name__ == "__main__":
    for a in list(sys.argv):
        if a.startswith("--prio="):
            PRIO = int(a[7:])
            sys.argv.remove(a)
        if a.startswith("--plan="):
            PLAN = a[7:]
            sys.argv.remove(a)
    if "--diag" in sys.argv:
        DIAG = 1
        sys.argv.remove("--diag")
    if "--diag2" in sys.argv:
        DIAG = 2
        sys.argv.remove("--diag2")
    out = sys.argv[1] if len(sys.argv) > 1 else "standalone__factorization_afm__recsys.s"
    open(out, "w").write(gen())
    print("wrote", out)
```

```python
import sys, struct
from asmkit import I, vr, auto_waits, check_hazards, emit
import sched2

KNAME = "standalone__factorization_afm__recsys_kernel"

FS = 2176
PS = 272
CELL = 0
EOK = CELL + 64
WOK = CELL + 128
POK = CELL + 132
TRASH = CELL + 136
HS = 256
BS = 512
U16 = 768
P16 = 896
H16 = 1024
WOFF = 2048
WRS = 192
E16 = WOFF + 64 * WRS + 128
LDS_TOTAL = E16 + 26 * FS
SCR = WOFF

vW, vBIAS, vLINA, vEOP, vX, vACC = 128, 160, 176, 192, 208, 224
vBP = 112
vCEN = [64, 72, 80, 88]
vSTR = [96, 104]
vD, vIDX = 44, 43
vaS = [40, 41]
vLANE = 42
vE, vS = 36, 37
vL, vN = 34, 35
vWt = 33

LOG2E = 1.4426950408889634
HC = 0.5 * LOG2E
DIAG = False


def f32bits(x):
    return struct.unpack("<I", struct.pack("<f", x))[0]


def build_tables():
    W = sched2.schedule()
    sched2.check(W)
    data = []
    for r0, r1 in W:
        pk = lambda a, b: (a * FS) | ((b * FS) << 16)
        ent = [pk(2 * r0[0], 2 * r1[0]), pk(2 * r0[0] + 1, 2 * r1[0] + 1)]
        L = len(r0[2])
        for k in range(11):
            kk = min(k, L - 1)
            ent.append(pk(r0[2][kk], r1[2][kk]))
        ent.append(L)
        ent.append((0 if r0[1] else 0x0000ffff) | (0 if r1[1] else 0xffff0000))
        ent.append(0)
        assert len(ent) == 16
        data += ent
    return data


def mfma(par, mt, k):
    acc = vACC + 16 * par + 4 * mt
    a = vW + (mt * 2 + k) * 4
    b = vBP + 8 * par + 4 * k
    c = (vBIAS + 4 * mt) if k == 0 else acc
    return I(f"v_mfma_f32_16x16x32_f16 {vr(acc,4)}, {vr(a,4)}, {vr(b,4)}, {vr(c,4)}", "mfma4",
             rd=list(range(a, a + 4)) + list(range(b, b + 4)), wr=range(acc, acc + 4), srcc=range(c, c + 4))


def smf(a, b):
    return I(f"v_smfmac_f32_16x16x64_f16 {vr(vD,4)}, {vr(a,4)}, {vr(b,8)}, v{vIDX}", "mfma4",
             rd=list(range(a, a + 4)) + list(range(b, b + 8)) + [vIDX], wr=range(vD, vD + 4), srcc=range(vD, vD + 4))


def prod(tau, i):
    d = vBP + 8 * (tau & 1) + i
    h = vCEN[tau] + i
    s = vSTR[tau & 1] + i
    return I(f"v_pk_mul_f16 v{d}, v{h}, v{s}", "valu", rd=[h, s], wr=[d])


def cvt(par, i):
    x = vACC + 16 * par + 2 * i
    return I(f"v_cvt_pk_f16_f32 v{vX+i}, |v{x}|, |v{x+1}|", "valu", rd=[x, x + 1], wr=[vX + i])


def ldc(dst, addr, c):
    return I(f"ds_read_b128 {vr(dst+4*c,4)}, v{addr} offset:{c*PS}", "dsr", rd=[addr], wr=range(dst + 4 * c, dst + 4 * c + 4))


def V(text, rd, wr, kind="valu"):
    return I(text, kind, rd=rd, wr=wr)


def S_(text):
    return I(text, "salu")


def fin_parts():
    return dict(
        e=V(f"v_add_f32 v{vE}, v{vD}, v{vD+2}", [vD, vD + 2], [vE]),
        s=V(f"v_add_f32 v{vS}, v{vD+1}, v{vD+3}", [vD + 1, vD + 3], [vS]),
        z0=V(f"v_mov_b64 {vr(vD,2)}, 0", [], [vD, vD + 1]),
        z1=V(f"v_mov_b64 {vr(vD+2,2)}, 0", [], [vD + 2, vD + 3]),
        x=V(f"v_exp_f32 v{vWt}, v{vE}", [vE], [vWt], "trans"),
        l=V(f"v_add_f32 v{vL}, v{vL}, v{vWt}", [vL, vWt], [vL]),
        n=V(f"v_fma_f32 v{vN}, v{vWt}, v{vS}, v{vN}", [vWt, vS, vN], [vN]))


PLAN = "c"
PRIO = 3
NFIRST = 3


def slot(tau):
    par = tau & 1
    prev = (tau + 3) % 4
    nxt = (tau + 1) % 4
    M = lambda mt, k: mfma(par, mt, k)
    C = [cvt(1 - par, i) for i in range(8)]
    P = [prod(nxt, i) for i in range(8)]
    if PLAN != "a":
        P[0].rd |= set(range(vSTR[nxt & 1], vSTR[nxt & 1] + 8))
    SL = smf(vLINA + 4 * prev, vBP + 8 * (1 - par))
    SE = smf(vEOP + 4 * prev, vX)
    F = fin_parts()
    t0 = lambda x: x if tau == 0 else []
    t1 = lambda x: x if tau == 1 else []
    mov = [S_("s_movrels_b32 s57, s83"), S_("s_add_u32 m0, m0, 1")]
    spl = [S_("s_and_b32 s58, s57, 0xffff"), S_("s_lshr_b32 s59, s57, 16")]
    adr = [V(f"v_add_u32 v{vaS[0]}, s58, v{vLANE}", [vLANE], [vaS[0]]), V(f"v_add_u32 v{vaS[1]}, s59, v{vLANE}", [vLANE], [vaS[1]])]
    lds = []
    if tau == 1:
        lds = [ldc(vSTR[0], vaS[0], 0), ldc(vSTR[0], vaS[0], 1)]
    if tau == 2:
        lds = [ldc(vSTR[1], vaS[1], 0), ldc(vSTR[1], vaS[1], 1)]
    if PLAN in ("a", "b"):
        L = [M(0, 0)] + t1([F["x"]]) + [SL, C[0], C[1], M(0, 1), C[2], C[3]] + t0(mov)
        L += [M(1, 0), C[4], C[5]] + t0(spl) + [M(1, 1), C[6], C[7]] + t1([F["l"], F["n"]])
        L += [M(2, 0), P[0], SE, P[1], M(2, 1), P[2], P[3]] + t0(adr)
        L += [M(3, 0), P[4], P[5], M(3, 1), P[6], P[7]] + t0([F["e"], F["s"], F["z0"], F["z1"]]) + lds
        return L
    if PLAN == "c":
        L = [M(0, 0), C[0], C[1]] + t1([F["x"]]) + [SL] + t0(mov) + t1([F["l"]]) + [M(0, 1), C[2], C[3]]
        L += [M(1, 0), C[4], C[5]] + t0(spl) + [M(1, 1), C[6], C[7]]
        L += [M(2, 0), P[0], P[1], SE] + t0(adr) + t1([F["n"]]) + [M(2, 1), P[2], P[3]]
        L += [M(3, 0), P[4], P[5], M(3, 1), P[6], P[7]] + t0([S_("s_nop 0"), F["e"], F["s"], F["z0"], F["z1"]]) + lds
        return L
    if PLAN == "d":
        L = [M(0, 0)] + t1([F["x"]]) + [SL, C[0], M(0, 1), C[1], C[2], M(1, 0), C[3], C[4]] + t0(mov)
        L += [M(1, 1), C[5], C[6]] + t0(spl) + [M(2, 0), C[7], P[0]] + t1([F["l"]])
        L += [M(2, 1), P[1], P[2], SE, P[3]] + t0(adr) + t1([F["n"]])
        L += [M(3, 0), P[4], P[5], M(3, 1), P[6], P[7]] + t0([S_("s_nop 2"), F["e"], F["s"], F["z0"], F["z1"]]) + lds
        return L
    raise SystemExit("plan")


def flags():
    G = 48
    mx = lambda d, a, b, c: V(f"v_pk_maximum3_f16 v{d}, v{a}, v{b}, v{c} neg_lo:[0,1,0] neg_hi:[0,1,0]", [a, b, c], [d])
    L = [mx(238, G, G, G + 1), mx(237, 232, 232, 233)]
    for k in range(G + 1, G + 7):
        L.append(mx(238, 238, k, k + 1))
        if k - G <= 2:
            L.append(mx(237, 237, 232 + k - G, 233 + k - G))
    L += [mx(238, 238, G + 7, 238), mx(237, 237, 235, 237)]
    L += [V("v_and_b32 v15, 0x7fff, v15", [15], [15]),
          V("v_lshrrev_b32 v239, 3, v1", [1], [239]), V("v_lshlrev_b32 v239, 2, v239", [239], [239]),
          V("v_max_u16_sdwa v238, v238, v238 dst_sel:DWORD dst_unused:UNUSED_PAD src0_sel:WORD_0 src1_sel:WORD_1", [238], [238]),
          V("v_max_u16_sdwa v237, v237, v237 dst_sel:DWORD dst_unused:UNUSED_PAD src0_sel:WORD_0 src1_sel:WORD_1", [237], [237]),
          S_("s_lshl_b32 s57, s54, 5"), S_(f"s_add_u32 s57, s57, {EOK}"),
          V("v_add_u32 v239, s57, v239", [239], [239]),
          V("v_mov_b32 v16, 1", [], [16]), V(f"v_mov_b32 v17, {TRASH}", [], [17]),
          V("v_cmp_le_u32 vcc, 0x2800, v238", [238], []), V(f"v_mov_b32 v18, {WOK}", [], [18]), V("v_mov_b32 v19, s44", [], [19]),
          V("v_cndmask_b32 v239, v17, v239, vcc", [17, 239], [239]),
          V("v_cmp_le_u32 vcc, 0x1c00, v237", [237], []), S_("s_nop 1"),
          V("v_cndmask_b32 v18, v17, v18, vcc", [17, 18], [18]),
          V("v_cmp_le_u32 vcc, 0x2400, v15", [15], []),
          I("ds_write_b32 v239, v16", "dsw", rd=[239, 16]), I("ds_write_b32 v18, v16", "dsw", rd=[18, 16]),
          V("v_cndmask_b32 v19, v17, v19, vcc", [17, 19], [19]),
          I("ds_write_b32 v19, v16", "dsw", rd=[19, 16])]
    return L


def loop_parts():
    sl = [slot(t) for t in range(4)]
    pre = []
    for reg, ad in ((vCEN[0], 96), (vCEN[2], 98), (vCEN[1], 97), (vCEN[3], 99), (vSTR[1], 97)):
        pre += [ldc(reg, ad, 0), ldc(reg, ad, 1)]
    pre += [ldc(vSTR[0], vaS[0], 0), ldc(vSTR[0], vaS[0], 1)]
    pre += flags()
    for i in range(8):
        pre.append(V(f"v_pk_mul_f16 v{vBP+i}, v{vCEN[2]+i}, v{vCEN[0]+i}", [vCEN[2] + i, vCEN[0] + i], [vBP + i]))
    br0 = S_("s_branch L_slot2")
    br0.fixed = 5
    pre.append(br0)
    ctl = [S_("s_sub_u32 s60, s60, 1"), S_("s_cmp_lg_u32 s60, 0")]
    if PRIO:
        ctl = [S_("s_sub_u32 s60, s60, 1"), S_(f"s_cmp_lg_u32 s60, {PRIO}"), S_("s_cbranch_scc1 L_keep"), S_("s_setprio 0"), S_("L_keep:"), S_("s_cmp_lg_u32 s60, 0")]
    s3 = sl[3]
    s3 = s3[:-4] + ctl + s3[-4:] + [S_("s_cbranch_scc1 L_loop")]
    sl[3] = s3
    F = fin_parts()
    C = [cvt(1, i) for i in range(8)]
    post = [smf(vLINA + 12, vBP + 8), S_("s_nop 4")] + C + [S_("s_nop 0"), S_("s_nop 0"), smf(vEOP + 12, vX), S_("s_nop 7"),
            F["e"], F["s"], F["x"], S_("s_nop 0"), F["l"], F["n"]]
    body = sl[0] + sl[1] + sl[2] + sl[3]
    auto_waits(pre + sl[2] + sl[3], body, post, nsim=3)
    errs = []
    for trips in (1, 2, 3):
        errs += check_hazards(pre + sl[2] + sl[3] + body * trips + post, f"trips{trips}")
    errs = sorted(set(errs))
    if errs:
        print("\n".join(errs), file=sys.stderr)
        raise SystemExit("hazards")
    return pre, sl, post


def gen():
    tbl = build_tables()
    o = []
    A = o.append
    with open("standalone__factorization_afm__recsys.s.ref") as f:
        for line in f:
            if line.startswith("; @launch"):
                break
            if line.startswith("; Override") or line.startswith("; grid="):
                continue
            A(line.rstrip())
    A(f"; @launch grid=(256,1,1) block=(512,1,1) lds={LDS_TOTAL}")
    A('.amdgcn_target "amdgcn-amd-amdhsa--gfx950"')
    A(".text")
    A(f".globl {KNAME}")
    A(".p2align 8")
    A(f".type {KNAME},@function")
    A(f"{KNAME}:")

    def T(s):
        for l in s.strip("\n").split("\n"):
            l = l.strip()
            if l:
                A(l if l.endswith(":") else "  " + l)

    stamp_n = [0]

    rt_n = [0]
    def stamp(rt=False):
        if DIAG:
            k = stamp_n[0]
            stamp_n[0] += 1
            T(f"s_memtime s[{62+2*k}:{63+2*k}]") if k < 9 else None
            if rt and DIAG == 2:
                T(f"s_memrealtime s[{16+2*rt_n[0]}:{17+2*rt_n[0]}]")
                rt_n[0] += 1

    if DIAG:
        T("s_memrealtime s[98:99]")
    stamp()
    T16 = 1152
    T32 = 1280
    T(f"""
s_cmp_ge_u32 s2, 256
s_cbranch_scc1 L_end
s_load_dwordx2 s[24:25], s[0:1], 0
s_load_dwordx2 s[28:29], s[0:1], 8
s_load_dwordx8 s[8:15], s[0:1], 32
s_load_dwordx2 s[48:49], s[0:1], 64
s_getpc_b64 s[22:23]
L_pc:
v_lshrrev_b32 v2, 6, v0
v_and_b32 v1, 63, v0
v_and_b32 v3, 15, v0
v_readfirstlane_b32 s52, v2
v_lshl_add_u32 v3, v2, 4, v3
v_lshlrev_b32 v3, 7, v3
v_min_u32 v3, L_pf_end-L_pc-4, v3
s_lshl_b32 s61, s52, 6
s_add_u32 s61, s61, L_tbl-L_pc
global_load_dword v5, v3, s[22:23]
s_lshr_b32 s53, s52, 1
s_and_b32 s54, s52, 1
s_mul_i32 s55, s53, 28
s_cmp_eq_u32 s53, 3
s_cselect_b32 s56, 4, 0
s_sub_u32 s55, s55, s56
s_mul_i32 s56, s2, 1664
s_add_u32 s55, s55, s56
s_mul_i32 s56, s54, 832
s_add_u32 s56, s55, s56
v_lshrrev_b32 v6, 3, v1
v_mul_u32_u24 v24, 104, v6
v_and_b32 v7, 7, v1
v_lshlrev_b32 v25, 4, v7
v_lshlrev_b32 v28, 7, v7
s_mov_b32 s26, 425984
s_mov_b32 s27, 0x20000
s_mov_b32 s30, 128000
s_mov_b32 s31, 0x20000
s_mov_b32 s50, 8192
s_mov_b32 s51, 0x20000
s_lshr_b32 s57, s2, 3
s_and_b32 s57, s57, 15
s_lshl_b32 s57, s57, 3
s_add_u32 s57, s57, s52
s_lshl_b32 s57, s57, 10
s_waitcnt lgkmcnt(0)
buffer_load_dwordx4 v[8:11], v24, s[24:27], s56 offen
buffer_load_dwordx3 v[12:14], v24, s[24:27], s56 offen offset:16
buffer_load_dword v5, v28, s[28:31], s57 offen
s_load_dwordx16 s[80:95], s[22:23], s61
""")
    if DIAG:
        stamp()
    T(f"""
s_and_b32 s18, s52, 3
s_mov_b32 s20, {T16}
s_mov_b32 s44, {TRASH}
s_mov_b32 s21, {T32}
s_cmp_eq_u32 s18, 1
s_cselect_b32 s16, s12, s10
s_cselect_b32 s17, s13, s11
s_cselect_b32 s19, {f32bits(HC):#x}, 1.0
s_cselect_b32 s20, {H16}, s20
s_cselect_b32 s45, 1, 0
s_cmp_eq_u32 s18, 2
s_cselect_b32 s16, s14, s16
s_cselect_b32 s17, s15, s17
s_cselect_b32 s20, {P16}, s20
s_cselect_b32 s44, {POK}, s44
s_cmp_eq_u32 s18, 0
s_cselect_b32 s21, {BS}, s21
s_cmp_eq_u32 s18, 3
s_cselect_b32 s21, {BS}, s21
v_lshlrev_b32 v26, 4, v0
v_lshlrev_b32 v27, 1, v1
""")
    def perm(dst, src, lin, t0, t1):
        T(f"""
v_lshrrev_b32 v{t0}, 5, v{src}
v_bfe_u32 v{t1}, v{src}, 3, 1
v_lshl_add_u32 v{dst}, v{t0}, 1, v{t1}
v_bfe_u32 v{t1}, v{src}, 1, 1
v_lshl_add_u32 v{dst}, v{dst}, 1, v{t1}
v_bfe_u32 v{t0}, v{src}, {4 if lin else 2}, 1
v_bfe_u32 v{t1}, v{src}, {2 if lin else 4}, 1
v_lshl_add_u32 v{t1}, v{t0}, 1, v{t1}
v_lshl_add_u32 v{dst}, v{dst}, 2, v{t1}
v_and_b32 v{t1}, 1, v{src}
v_lshl_add_u32 v{dst}, v{dst}, 1, v{t1}
v_lshlrev_b32 v{dst}, 1, v{dst}
""")
    perm(33, 1, True, 2, 3)
    perm(34, 1, False, 2, 3)
    T(f"""
v_lshrrev_b32 v29, 3, v0
s_cmp_lg_u32 s45, 0
s_cselect_b64 s[46:47], -1, 0
v_cndmask_b32 v33, v33, v34, s[46:47]
v_add_u32 v33, s20, v33
""")
    perm(31, 29, True, 2, 3)
    T(f"""
global_load_dwordx4 v[16:19], v26, s[8:9]
global_load_dwordx4 v[20:23], v25, s[12:13]
global_load_ushort v15, v27, s[16:17]
s_mul_i32 s57, s53, {FS}
s_lshl_b32 s58, s54, 7
s_add_u32 s57, s57, s58
s_add_u32 s57, s57, {E16}
v_mul_u32_u24 v30, {PS}, v7
v_lshl_add_u32 v30, v6, 4, v30
v_add_u32 v30, s57, v30
v_lshrrev_b32 v2, 4, v29
v_mul_u32_u24 v29, {WRS}, v29
v_lshl_add_u32 v29, v2, 5, v29
v_add_u32 v29, v29, v25
v_lshlrev_b32 v32, 2, v1
v_mov_b32 v35, 0
ds_write_b32 v32, v35 offset:{CELL}
v_add_u32 v32, s21, v32
""")
    for k in range(8):
        T(f"v_mov_b64 v[{vACC+16+2*k}:{vACC+17+2*k}], 0")
    for k in range(4):
        T(f"v_mov_b64 v[{vBP+8+2*k}:{vBP+9+2*k}], 0")
    for k in range(16):
        T(f"v_mov_b64 v[{vLINA+2*k}:{vLINA+1+2*k}], 0")
    T(f"""
v_lshrrev_b32 v3, 4, v1
v_and_b32 v4, 15, v1
v_lshrrev_b32 v36, 2, v4
v_lshl_add_u32 v36, v3, 4, v36
v_mul_u32_u24 v36, {WRS}, v36
v_lshl_add_u32 v36, v3, 5, v36
v_and_b32 v2, 3, v1
v_lshl_add_u32 v36, v2, 3, v36
v_lshlrev_b32 v37, 4, v3
v_bfe_u32 v2, v1, 4, 1
v_lshrrev_b32 v6, 5, v1
v_bfe_u32 v7, v1, 1, 1
v_lshl_add_u32 v38, v2, 1, v6
v_lshl_add_u32 v38, v38, 1, v7
v_lshlrev_b32 v38, 4, v38
v_lshl_add_u32 v39, v6, 1, v2
v_lshl_add_u32 v39, v39, 1, v7
v_lshlrev_b32 v39, 4, v39
v_add_u32 v39, {H16}, v39
s_mov_b32 s32, 0xaaaaaaaa
s_mov_b32 s33, 0xaaaaaaaa
s_mov_b32 s34, 0xcccccccc
s_mov_b32 s35, 0xcccccccc
v_mov_b32 v2, {U16}
v_mov_b32 v6, {P16}
v_cndmask_b32 v2, v2, v6, s[32:33]
v_add_u32 v38, v38, v2
v_mov_b32 v2, 0x44444444
v_mov_b32 v6, 0xeeeeeeee
v_cndmask_b32 v{vIDX}, v2, v6, s[34:35]
v_mul_u32_u24 v{vLANE}, {2*PS}, v3
v_lshl_add_u32 v{vLANE}, v4, 4, v{vLANE}
v_add_u32 v{vLANE}, {E16}, v{vLANE}
s_waitcnt lgkmcnt(0)
s_and_b32 s57, s80, 0xffff
s_lshr_b32 s58, s80, 16
v_add_u32 v96, s57, v{vLANE}
v_add_u32 v97, s58, v{vLANE}
s_and_b32 s57, s81, 0xffff
s_lshr_b32 s58, s81, 16
v_add_u32 v98, s57, v{vLANE}
v_add_u32 v99, s58, v{vLANE}
s_and_b32 s57, s82, 0xffff
s_lshr_b32 s58, s82, 16
v_add_u32 v{vaS[0]}, s57, v{vLANE}
v_add_u32 v{vaS[1]}, s58, v{vLANE}
s_mov_b32 m0, 0
s_add_u32 s60, s93, 1
s_mov_b32 s58, -1
s_mov_b32 s59, s94
v_mov_b32 v{vD+1}, 0xff800000
v_mov_b64 v[{vD+2}:{vD+3}], 0
v_cndmask_b32 v{vD}, 0, v{vD+1}, s[58:59]
v_mov_b32 v{vD+1}, 0
s_waitcnt vmcnt(4)
""")
    stamp()
    G = 48
    NG1 = NFIRST
    def gather(t):
        T(f"buffer_load_dwordx4 v[{G+4*t}:{G+4*t+3}], v{8+t}, s[28:31], 0 offen")
    for t in range(7):
        T(f"v_lshl_add_u32 v{8+t}, v{8+t}, 7, v25")
        if t < NG1:
            gather(t)
    T(f"s_waitcnt vmcnt({NG1})")
    T("v_dot2_f32_bf16 v236, v16, v20, 0")
    for i in range(4):
        T(f"v_lshlrev_b32 v{224+2*i}, 16, v{16+i}\nv_and_b32 v{225+2*i}, 0xffff0000, v{16+i}")
        if i < 3:
            T(f"v_dot2_f32_bf16 v236, v{17+i}, v{21+i}, v236")
    T("v_lshlrev_b32 v15, 16, v15")
    for i in range(4):
        T(f"v_cvt_pk_f16_f32 v{232+i}, v{224+2*i}, v{225+2*i}")
    T(f"""
v_add_f32_dpp v236, v236, v236 quad_perm:[1,0,3,2] row_mask:0xf bank_mask:0xf
ds_write_b128 v29, v[232:235] offset:{WOFF}
ds_write_b32 v32, v15
v_add_f32_dpp v236, v236, v236 quad_perm:[2,3,0,1] row_mask:0xf bank_mask:0xf
v_mul_f32 v15, s19, v15
s_nop 0
v_add_f32_dpp v236, v236, v236 row_half_mirror row_mask:0xf bank_mask:0xf
v_cvt_f16_f32 v15, v15
v_mul_f32 v236, {f32bits(HC):#x}, v236
ds_write_b16 v33, v15
v_cvt_f16_f32 v236, v236
ds_write_b16 v31, v236 offset:{U16}
s_waitcnt lgkmcnt(0)
s_barrier
""")
    stamp()
    rd = []
    for mt in range(4):
        for k in range(2):
            for hf in range(2):
                r = vW + (mt * 2 + k) * 4 + 2 * hf
                rd.append(f"ds_read_b64_tr_b16 v[{r}:{r+1}], v36 offset:{WOFF + (8*k+4*hf)*WRS + mt*32}")
    for mt in range(4):
        r = vBIAS + 4 * mt
        rd.append(f"ds_read_b128 v[{r}:{r+3}], v37 offset:{BS + 64*mt}")
    rest = list(range(NG1, 7))
    per = -(-len(rd) // max(1, len(rest)))
    for t in rest:
        gather(t)
        for x in rd[:per]:
            T(x)
        rd = rd[per:]
    for x in rd:
        T(x)
    for tau in range(4):
        ml = (0xF << (4 * tau)) * 0x10001
        T(f"s_mov_b32 exec_lo, {ml:#x}\ns_mov_b32 exec_hi, {ml:#x}")
        T(f"ds_read_b128 v[{vLINA+4*tau}:{vLINA+4*tau+3}], v38")
        me = ml & 0x55555555
        T(f"s_mov_b32 exec_lo, {me:#x}\ns_mov_b32 exec_hi, {me:#x}")
        T(f"ds_read_b128 v[{vEOP+4*tau}:{vEOP+4*tau+3}], v39")
    T("s_mov_b64 exec, -1")

    def conv(t):
        g = G + 4 * t
        T(f"s_waitcnt vmcnt({6-t})")
        for i in range(4):
            T(f"v_lshlrev_b32 v{224+2*i}, 16, v{g+i}\nv_and_b32 v{225+2*i}, 0xffff0000, v{g+i}")
        for i in range(4):
            T(f"v_cvt_pk_f16_f32 v{g+i}, v{224+2*i}, v{225+2*i}")
        T(f"ds_write_b128 v30, v[{g}:{g+3}] offset:{t*4*FS}")
    for t in range(4):
        conv(t)
    stamp()
    conv(4); conv(5)
    T("s_cmp_ge_u32 s53, 2\ns_cbranch_scc1 L_skip6")
    conv(6)
    T("L_skip6:")
    T(f"v_mov_b64 v[{vL}:{vL+1}], 0")
    if PRIO:
        T("s_cmp_lt_u32 s52, 4\ns_cbranch_scc1 L_noprio\ns_setprio 1\nL_noprio:")
    T("""
s_waitcnt vmcnt(0) lgkmcnt(0)
s_barrier
""")
    stamp(True)
    pre, sl, post = loop_parts()
    o += emit(pre)
    A(".p2align 6")
    A("L_loop:")
    o += emit(sl[0])
    o += emit(sl[1])
    A("L_slot2:")
    o += emit(sl[2])
    o += emit(sl[3])
    o += emit(post)
    stamp(True)
    T(f"""
v_lshrrev_b32 v12, 4, v0
v_mul_u32_u24 v12, 17, v12
v_and_b32 v13, 15, v0
v_add_lshl_u32 v12, v12, v13, 3
ds_write_b64 v12, v[{vL}:{vN}] offset:{SCR}
v_and_b32 v13, 31, v1
v_mul_u32_u24 v13, 17, v13
v_lshrrev_b32 v14, 5, v1
s_lshl_b32 s57, s52, 1
v_add_u32 v14, s57, v14
v_add_lshl_u32 v13, v13, v14, 3
v_lshlrev_b32 v15, 2, v14
v_mov_b32 v19, 0
s_waitcnt lgkmcnt(0)
s_barrier
""")
    stamp()
    T(f"""
ds_read_b64 v[16:17], v13 offset:{SCR}
ds_read_b32 v18, v15 offset:{EOK}
ds_read_b64 v[20:21], v19 offset:{WOK}
s_lshl_b32 s57, s2, 4
v_add_u32 v14, s57, v14
v_lshlrev_b32 v14, 1, v14
s_waitcnt lgkmcnt(2)
""")
    dpps = ["quad_perm:[1,0,3,2]", "quad_perm:[2,3,0,1]", "row_half_mirror", "row_mirror"]
    for d in dpps:
        T(f"v_add_f32_dpp v16, v16, v16 {d} row_mask:0xf bank_mask:0xf\nv_add_f32_dpp v17, v17, v17 {d} row_mask:0xf bank_mask:0xf\ns_nop 0")
    T(f"""
v_mov_b32 v22, v16
v_mov_b32 v23, v17
s_nop 0
v_permlane16_swap_b32 v16, v22
v_permlane16_swap_b32 v17, v23
s_nop 0
v_add_f32 v16, v16, v22
v_add_f32 v17, v17, v23
v_rcp_f32 v22, v16
v_and_b32 v13, 31, v1
v_mul_f32 v17, v17, v22
v_cmp_eq_u32 vcc, 0, v13
v_cvt_pk_bf16_f32 v24, v17, v17
s_and_saveexec_b64 s[58:59], vcc
buffer_store_short v24, v14, s[48:51], 0 offen
s_waitcnt lgkmcnt(0)
v_and_b32 v18, v18, v20
v_mov_b32 v22, 0x1f800000
v_mov_b32 v23, 0x71800000
v_and_b32 v18, v18, v21
v_mov_b32 v25, 0x207
v_med3_f32 v22, v16, v22, v23
v_cmp_eq_u32 s[44:45], 0, v18
v_cmp_class_f32 s[46:47], v17, v25
v_cmp_neq_f32 vcc, v22, v16
@DIAG@
s_or_b64 s[44:45], s[44:45], s[46:47]
s_or_b64 s[44:45], s[44:45], vcc
s_and_b64 s[44:45], s[44:45], exec
s_cbranch_scc1 L_slow
L_end:
s_endpgm
L_pf_end:
""")
    T(f"""
L_slow:
s_mov_b64 exec, -1
v_lshlrev_b32 v2, 1, v1
v_add_u32 v3, 4096, v2
""")
    for d in range(64):
        T(f"global_load_ushort v{128+d}, v{2 if d < 32 else 3}, s[8:9] offset:{(d % 32) * 128}")
    T(f"""
global_load_ushort v100, v2, s[10:11]
global_load_ushort v101, v2, s[12:13]
global_load_ushort v102, v2, s[14:15]
s_mul_i32 s36, s52, 6656
s_add_u32 s36, s36, {E16}
v_lshlrev_b32 v4, 2, v1
v_add_u32 v4, s36, v4
s_waitcnt vmcnt(0)
""")
    for d in range(64):
        T(f"v_lshlrev_b32 v{128+d}, 16, v{128+d}")
    T("""
v_lshlrev_b32 v100, 16, v100
v_lshlrev_b32 v101, 16, v101
v_lshlrev_b32 v102, 16, v102
s_mov_b32 s37, 0
L_slow_b:
s_cmp_eq_u32 s37, 0
s_cselect_b32 s38, s44, s45
s_cmp_eq_u32 s38, 0
s_cbranch_scc1 L_slow_next
s_lshl_b32 s39, s2, 4
s_lshl_b32 s40, s52, 1
s_add_u32 s39, s39, s40
s_add_u32 s39, s39, s37
s_mul_i32 s40, s39, 104
v_lshlrev_b32 v5, 2, v1
buffer_load_dword v6, v5, s[24:27], s40 offen
s_mov_b32 s41, 0
v_mov_b32 v7, v4
s_waitcnt vmcnt(0)
L_slow_rows:
v_readlane_b32 s42, v6, s41
s_nop 3
s_lshl_b32 s42, s42, 7
buffer_load_ushort v8, v2, s[28:31], s42 offen
s_waitcnt vmcnt(0)
v_lshlrev_b32 v8, 16, v8
ds_write_b32 v7, v8
v_add_u32 v7, 256, v7
s_add_u32 s41, s41, 1
s_cmp_lt_u32 s41, 26
s_cbranch_scc1 L_slow_rows
v_mov_b32 v110, 0xff800000
v_mov_b32 v111, 0
v_mov_b32 v112, 0
s_mov_b32 s41, 0
s_waitcnt lgkmcnt(0)
L_slow_i:
s_lshl_b32 s42, s41, 8
v_add_u32 v7, s42, v4
ds_read_b32 v103, v7
s_add_u32 s43, s41, 1
L_slow_j:
s_lshl_b32 s42, s43, 8
v_add_u32 v7, s42, v4
ds_read_b32 v104, v7
s_waitcnt lgkmcnt(0)
v_mul_f32 v105, v103, v104
v_cvt_pk_bf16_f32 v105, v105, v105
v_lshlrev_b32 v105, 16, v105
v_mov_b32 v106, v100
v_mul_f32 v107, v105, v102
""")
    for g in range(8):
        for k in range(8):
            T(f"v_readlane_b32 s{64+k}, v105, {8*g+k}")
        for k in range(8):
            T(f"v_fma_f32 v106, s{64+k}, v{128+8*g+k}, v106")
    T("v_max_f32 v106, 0, v106\nv_mul_f32 v106, v106, v101\ns_nop 1")
    for dd in ["quad_perm:[1,0,3,2]", "quad_perm:[2,3,0,1]", "row_half_mirror", "row_mirror"]:
        T(f"v_add_f32_dpp v106, v106, v106 {dd} row_mask:0xf bank_mask:0xf\nv_add_f32_dpp v107, v107, v107 {dd} row_mask:0xf bank_mask:0xf\ns_nop 0")
    for sw in ("v_permlane16_swap_b32", "v_permlane32_swap_b32"):
        T(f"""
v_mov_b32 v108, v106
v_mov_b32 v109, v107
s_nop 1
{sw} v106, v108
{sw} v107, v109
s_nop 1
v_add_f32 v106, v106, v108
v_add_f32 v107, v107, v109
""")
    T(f"""
v_mul_f32 v106, {f32bits(LOG2E):#x}, v106
v_max_f32 v108, v110, v106
v_sub_f32 v109, v110, v108
v_sub_f32 v106, v106, v108
v_exp_f32 v109, v109
v_exp_f32 v106, v106
v_mov_b32 v110, v108
s_nop 0
v_mul_f32 v111, v111, v109
v_mul_f32 v112, v112, v109
v_add_f32 v111, v111, v106
v_fma_f32 v112, v106, v107, v112
s_add_u32 s43, s43, 1
s_cmp_lt_u32 s43, 26
s_cbranch_scc1 L_slow_j
s_add_u32 s41, s41, 1
s_cmp_lt_u32 s41, 25
s_cbranch_scc1 L_slow_i
v_rcp_f32 v111, v111
s_lshl_b32 s39, s39, 1
v_mov_b32 v7, s39
v_mul_f32 v112, v112, v111
v_cvt_pk_bf16_f32 v112, v112, v112
s_waitcnt vmcnt(0)
s_mov_b64 exec, 1
buffer_store_short v112, v7, s[48:51], 0 offen
s_mov_b64 exec, -1
L_slow_next:
s_add_u32 s37, s37, 1
s_cmp_lt_u32 s37, 2
s_cbranch_scc1 L_slow_b
s_endpgm
""")
    if DIAG:
        ns = min(stamp_n[0], 9)
        d = [f"s_memtime s[{62+2*ns}:{63+2*ns}]", "s_memrealtime s[96:97]", "s_load_dwordx2 s[40:41], s[0:1], 80", "s_waitcnt lgkmcnt(0)",
             "s_mov_b64 exec, 1", "s_lshl_b32 s42, s2, 3", "s_add_u32 s42, s42, s52", "s_lshl_b32 s42, s42, 6", "v_mov_b32 v1, s42",
             "v_mov_b32 v2, s98", "global_store_dword v1, v2, s[40:41]", "v_mov_b32 v2, s96", "global_store_dword v1, v2, s[40:41] offset:4"]
        for k in range(1, ns + 1):
            d += [f"s_sub_u32 s42, s{62+2*k}, s62", "v_mov_b32 v2, s42", f"global_store_dword v1, v2, s[40:41] offset:{4+4*k}"]
        d += ["s_getreg_b32 s42, hwreg(HW_REG_HW_ID)", "v_mov_b32 v2, s42", "global_store_dword v1, v2, s[40:41] offset:56"]
        for k in range(rt_n[0]):
            d += [f"s_sub_u32 s42, s{16+2*k}, s98", "v_mov_b32 v2, s42", f"global_store_dword v1, v2, s[40:41] offset:{44+4*k}"]
        assert 62 + 2 * ns + 1 < 80
        txt = "\n".join("  " + x for x in d)
    else:
        txt = ""
    o[:] = [txt if l.strip() == "@DIAG@" else l for l in o]
    A(".p2align 6")
    A(".type L_tbl,@object")
    A("L_tbl:")
    for k in range(0, len(tbl), 16):
        A("  .long " + ", ".join(f"{x:#x}" for x in tbl[k:k + 16]))
    A('.section .rodata,"a"')
    A(".p2align 6")
    A(f".amdhsa_kernel {KNAME}")
    A("""  .amdhsa_next_free_vgpr 256
  .amdhsa_next_free_sgpr 102
  .amdhsa_accum_offset 256
  .amdhsa_group_segment_fixed_size 0
  .amdhsa_kernarg_size 88
  .amdhsa_user_sgpr_count 2
  .amdhsa_user_sgpr_kernarg_segment_ptr 1
  .amdhsa_system_sgpr_workgroup_id_x 1
.end_amdhsa_kernel""")
    return "\n".join(o) + "\n"


if __name__ == "__main__":
    for a in list(sys.argv):
        if a.startswith("--nfirst="):
            NFIRST = int(a[9:])
            sys.argv.remove(a)
        if a.startswith("--prio="):
            PRIO = int(a[7:])
            sys.argv.remove(a)
        if a.startswith("--plan="):
            PLAN = a[7:]
            sys.argv.remove(a)
    if "--diag" in sys.argv:
        DIAG = 1
        sys.argv.remove("--diag")
    if "--diag2" in sys.argv:
        DIAG = 2
        sys.argv.remove("--diag2")
    out = sys.argv[1] if len(sys.argv) > 1 else "standalone__factorization_afm__recsys.s"
    open(out, "w").write(gen())
    print("wrote", out)
```

```python
import re


def regs(spec):
    m = re.fullmatch(r"v\[(\d+):(\d+)\]", spec)
    if m:
        return list(range(int(m.group(1)), int(m.group(2)) + 1))
    m = re.fullmatch(r"v(\d+)", spec)
    return [int(m.group(1))]


def vr(a, n=1):
    return f"v{a}" if n == 1 else f"v[{a}:{a + n - 1}]"


class I:
    def __init__(self, text, kind, rd=(), wr=(), srcc=()):
        self.text, self.kind = text, kind
        self.rd, self.wr, self.srcc = set(rd), set(wr), set(srcc)
        self.wait = None
        self.fixed = None

    def __repr__(self):
        return self.text


def auto_waits(seq_pre, body, seq_post, nsim=3):
    for ins in list(seq_pre) + list(body) + list(seq_post):
        ins.wait = ins.fixed
    changed = True
    while changed:
        changed = False
        for trips in range(1, nsim + 1):
            seq = list(seq_pre) + list(body) * trips + list(seq_post)
            issued = 0
            done = 0
            pend = {}
            for ins in seq:
                if ins.wait is not None:
                    done = max(done, issued - ins.wait)
                need = -1
                touched = ins.rd | ins.wr
                for r in touched:
                    if r in pend and pend[r] >= done:
                        if ins.kind == "dsr" and r in ins.wr and r not in ins.rd:
                            continue
                        need = max(need, pend[r])
                if need >= 0:
                    n = min(15, issued - need - 1)
                    if ins.wait is None or n < ins.wait:
                        ins.wait = n
                        changed = True
                    done = max(done, issued - ins.wait)
                if ins.kind in ("dsr", "dsw"):
                    if ins.kind == "dsr":
                        for r in ins.wr:
                            pend[r] = issued
                    issued += 1


def check_hazards(seq, name=""):
    flat = []
    for ins in seq:
        if ins.wait is not None:
            flat.append(I(f"s_waitcnt lgkmcnt({ins.wait})", "wait"))
        flat.append(ins)
    errs = []
    VAL = ("valu", "trans", "swap")
    for i, a in enumerate(flat):
        for j in range(i + 1, min(len(flat), i + 24)):
            b = flat[j]
            dist = j - i - 1
            if b.text.startswith("s_nop"):
                pass
            dist = 0
            for k in range(i + 1, j):
                t = flat[k].text
                m = re.match(r"s_nop (\d+)", t)
                dist += (int(m.group(1)) + 1) if m else 1
            need = 0
            if a.kind in VAL and b.kind in ("mfma8", "mfma4") and a.wr & (b.rd | b.srcc):
                need = 2
            if a.kind in ("mfma8", "mfma4"):
                p = 12 if a.kind == "mfma8" else 8
                if b.kind in VAL + ("dsr", "dsw") and a.wr & (b.rd | b.wr):
                    need = p
                if b.kind in ("mfma8", "mfma4"):
                    if a.wr & b.rd:
                        need = p
                    if a.wr & b.srcc and not (a.wr == b.srcc and a.kind == b.kind):
                        need = 10 if a.kind == "mfma8" else 6
                if b.kind in VAL and a.srcc & b.wr and not (a.wr & b.wr):
                    need = max(need, 7 if a.kind == "mfma8" else 3)
            if a.kind in VAL and b.kind == "swap" and a.wr & (b.rd | b.wr):
                need = max(need, 2)
            if a.kind in VAL and "dpp" in b.text and a.wr & b.rd:
                need = max(need, 2)
            if a.kind == "trans" and b.kind in VAL and a.wr & b.rd:
                need = max(need, 1)
            if need > dist:
                errs.append(f"{name}: [{a.text}] -> [{b.text}] needs {need} has {dist}")
    return errs


def emit(seq):
    out = []
    for ins in seq:
        if ins.wait is not None:
            out.append(f"  s_waitcnt lgkmcnt({ins.wait})")
        out.append(ins.text if ins.text.endswith(":") else "  " + ins.text)
    return out


def auto_waits_paths(paths):
    allins = []
    for p in paths:
        allins += p
    for ins in allins:
        ins.wait = ins.fixed
    changed = True
    while changed:
        changed = False
        for seq in paths:
            issued = 0
            done = 0
            pend = {}
            for ins in seq:
                if ins.wait is not None:
                    done = max(done, issued - ins.wait)
                need = -1
                for r in ins.rd | ins.wr:
                    if r in pend and pend[r] >= done:
                        if ins.kind == "dsr" and r in ins.wr and r not in ins.rd:
                            continue
                        need = max(need, pend[r])
                if need >= 0:
                    n = min(15, issued - need - 1)
                    if ins.wait is None or n < ins.wait:
                        ins.wait = n
                        changed = True
                    done = max(done, issued - ins.wait)
                if ins.kind in ("dsr", "dsw"):
                    if ins.kind == "dsr":
                        for r in ins.wr:
                            pend[r] = issued
                    issued += 1
```

```python
import sched2
def schedule():
    W=[[list(r) for r in w] for w in sched2.schedule()]
    for w in W:
        for r in w: r[2]=list(r[2])
    a,b=W[0][0][2],W[0][1][2]
    a.remove(4); x=b.pop(); a.append(x); a.remove(2); a.append(2); b.append(4)
    a,b=W[5][0][2],W[5][1][2]
    a.remove(2); a.append(2); b.remove(4); b.append(4)
    W[6][0][2].append(23); W[6][1][2].append(25)
    W[7][0][2].append(1);  W[7][1][2].append(1)
    half=[True,False,False,False,False,True,True,True]
    return W,half
def check(W,half):
    seen=set()
    def add(x,y):
        e=(min(x,y),max(x,y)); assert x!=y and e not in seen,e; seen.add(e)
    for w,h in zip(W,half):
        assert len(w[0][2])==len(w[1][2])==10
        for g,dg,lst in w:
            if dg: add(2*g,2*g+1)
            for k,y in enumerate(lst):
                add(2*g,y)
                if not (h and k==9): add(2*g+1,y)
    assert len(seen)==325,len(seen)
if __name__=="__main__":
    W,h=schedule(); check(W,h)
    for w,x in zip(W,h): print(x,w)
```

```python
import sys, struct
from asmkit import I, vr, auto_waits_paths, check_hazards, emit
import sched3

KNAME = "standalone__factorization_afm__recsys_kernel"

FS = 2176
PS = 272
CELL = 0
EOK = CELL
WOK = CELL + 64
POK = CELL + 68
TRASH = CELL + 72
SUM = CELL + 128
BS = 512
U16 = 768
P16 = 896
H16 = 1024
T16 = 1152
T32 = 1280
WOFF = 2048
WRS = 192
E16 = WOFF + 64 * WRS + 128
LDS_TOTAL = E16 + 26 * FS

vW, vBIAS, vLINA, vEOP, vX, vACC = 128, 160, 176, 192, 208, 224
vBP = 112
vCEN = [64, 72, 80, 88]
vSTR = [96, 104]
vD, vIDX = 44, 43
vE, vS = 36, 37
vL, vN = 34, 35
vWt = 33
NIT = 10
vaS = [40, 41]
vLANE = 42

LOG2E = 1.4426950408889634
HC = 0.5 * LOG2E
DIAG = 0
PRIO = 3
NFIRST = 3
OUTPF = 0


def f32bits(x):
    return struct.unpack("<I", struct.pack("<f", x))[0]


def build_tables():
    W, half = sched3.schedule()
    sched3.check(W, half)
    data = []
    for (r0, r1), h in zip(W, half):
        pk = lambda a, b: (a * FS) | ((b * FS) << 16)
        ent = [pk(2 * r0[0], 2 * r1[0]), pk(2 * r0[0] + 1, 2 * r1[0] + 1)]
        for k in range(NIT + 1):
            kk = min(k, NIT - 1)
            ent.append(pk(r0[2][kk], r1[2][kk]))
        ent.append(NIT + 1)
        ent.append((0 if r0[1] else 0x0000ffff) | (0 if r1[1] else 0xffff0000))
        ent.append(1 if h else 0xffff)
        assert len(ent) == 16
        data += ent
    return data


def mfma(par, mt, k):
    acc = vACC + 16 * par + 4 * mt
    a = vW + (mt * 2 + k) * 4
    b = vBP + 8 * par + 4 * k
    c = (vBIAS + 4 * mt) if k == 0 else acc
    return I(f"v_mfma_f32_16x16x32_f16 {vr(acc,4)}, {vr(a,4)}, {vr(b,4)}, {vr(c,4)}", "mfma4",
             rd=list(range(a, a + 4)) + list(range(b, b + 4)), wr=range(acc, acc + 4), srcc=range(c, c + 4))


def smf(a, b):
    return I(f"v_smfmac_f32_16x16x64_f16 {vr(vD,4)}, {vr(a,4)}, {vr(b,8)}, v{vIDX}", "mfma4",
             rd=list(range(a, a + 4)) + list(range(b, b + 8)) + [vIDX], wr=range(vD, vD + 4), srcc=range(vD, vD + 4))


def prod(tau, i):
    d = vBP + 8 * (tau & 1) + i
    h = vCEN[tau] + i
    s = vSTR[tau & 1] + i
    return I(f"v_pk_mul_f16 v{d}, v{h}, v{s}", "valu", rd=[h, s], wr=[d])


def cvt(par, i):
    x = vACC + 16 * par + 2 * i
    return I(f"v_cvt_pk_f16_f32 v{vX+i}, |v{x}|, |v{x+1}|", "valu", rd=[x, x + 1], wr=[vX + i])


def ldc(dst, addr, c):
    return I(f"ds_read_b128 {vr(dst+4*c,4)}, v{addr} offset:{c*PS}", "dsr", rd=[addr], wr=range(dst + 4 * c, dst + 4 * c + 4))


def V(text, rd, wr, kind="valu"):
    return I(text, kind, rd=rd, wr=wr)


def S_(text):
    return I(text, "salu")


def fin_parts():
    return dict(
        e=V(f"v_add_f32 v{vE}, v{vD}, v{vD+2}", [vD, vD + 2], [vE]),
        s=V(f"v_add_f32 v{vS}, v{vD+1}, v{vD+3}", [vD + 1, vD + 3], [vS]),
        z0=V(f"v_mov_b64 {vr(vD,2)}, 0", [], [vD, vD + 1]),
        z1=V(f"v_mov_b64 {vr(vD+2,2)}, 0", [], [vD + 2, vD + 3]),
        x=V(f"v_exp_f32 v{vWt}, v{vE}", [vE], [vWt], "trans"),
        l=V(f"v_add_f32 v{vL}, v{vL}, v{vWt}", [vL, vWt], [vL]),
        n=V(f"v_fma_f32 v{vN}, v{vWt}, v{vS}, v{vN}", [vWt, vS, vN], [vN]))


def slot(tau):
    par = tau & 1
    prev = (tau + 3) % 4
    nxt = (tau + 1) % 4
    M = lambda mt, k: mfma(par, mt, k)
    C = [cvt(1 - par, i) for i in range(8)]
    P = [prod(nxt, i) for i in range(8)]
    P[0].rd |= set(range(vSTR[nxt & 1], vSTR[nxt & 1] + 8))
    SL = smf(vLINA + 4 * prev, vBP + 8 * (1 - par))
    SE = smf(vEOP + 4 * prev, vX)
    F = fin_parts()
    t0 = lambda x: x if tau == 0 else []
    t1 = lambda x: x if tau == 1 else []
    mov = [S_("s_movrels_b32 s57, s83"), S_("s_add_u32 m0, m0, 1")]
    spl = [S_("s_and_b32 s58, s57, 0xffff"), S_("s_lshr_b32 s59, s57, 16")]
    adr = [V(f"v_add_u32 v{vaS[0]}, s58, v{vLANE}", [vLANE], [vaS[0]]), V(f"v_add_u32 v{vaS[1]}, s59, v{vLANE}", [vLANE], [vaS[1]])]
    lds = []
    if tau == 1:
        lds = [ldc(vSTR[0], vaS[0], 0), ldc(vSTR[0], vaS[0], 1)]
    if tau == 2:
        lds = [ldc(vSTR[1], vaS[1], 0), ldc(vSTR[1], vaS[1], 1)]
    L = [M(0, 0), C[0], C[1]] + t1([F["x"]]) + [SL] + t0(mov) + t1([F["l"]]) + [M(0, 1), C[2], C[3]]
    L += [M(1, 0), C[4], C[5]] + t0(spl) + [M(1, 1), C[6], C[7]]
    L += [M(2, 0), P[0], P[1], SE] + t0(adr) + t1([F["n"]]) + [M(2, 1), P[2], P[3]]
    L += [M(3, 0), P[4], P[5]] + t1([S_("s_cmp_eq_u32 s60, s95")]) + [M(3, 1), P[6], P[7]]
    L += t0([S_("s_nop 0"), F["e"], F["s"], F["z0"], F["z1"]]) + lds
    if tau == 1:
        L += [S_("s_cbranch_scc1 L_ep1")]
    return L


def flags():
    G = 48
    mx = lambda d, a, b, c: V(f"v_pk_maximum3_f16 v{d}, v{a}, v{b}, v{c} neg_lo:[0,1,0] neg_hi:[0,1,0]", [a, b, c], [d])
    L = [mx(238, G, G, G + 1), mx(237, 232, 232, 233)]
    for k in range(G + 1, G + 7):
        L.append(mx(238, 238, k, k + 1))
        if k - G <= 2:
            L.append(mx(237, 237, 232 + k - G, 233 + k - G))
    L += [mx(238, 238, G + 7, 238), mx(237, 237, 235, 237)]
    L += [V("v_and_b32 v38, 0x7fff, v38", [38], [38]),
          V("v_lshrrev_b32 v239, 3, v1", [1], [239]), V("v_lshlrev_b32 v239, 2, v239", [239], [239]),
          V("v_max_u16_sdwa v238, v238, v238 dst_sel:DWORD dst_unused:UNUSED_PAD src0_sel:WORD_0 src1_sel:WORD_1", [238], [238]),
          V("v_max_u16_sdwa v237, v237, v237 dst_sel:DWORD dst_unused:UNUSED_PAD src0_sel:WORD_0 src1_sel:WORD_1", [237], [237]),
          S_("s_lshl_b32 s57, s54, 5"),
          V("v_add_u32 v239, s57, v239", [239], [239]),
          V("v_mov_b32 v22, 1", [], [22]), V(f"v_mov_b32 v23, {TRASH}", [], [23]),
          V("v_cmp_le_u32 vcc, 0x2800, v238", [238], []), V(f"v_mov_b32 v24, {WOK}", [], [24]), V("v_mov_b32 v25, s44", [], [25]),
          V("v_cndmask_b32 v239, v23, v239, vcc", [23, 239], [239]),
          V("v_cmp_le_u32 vcc, 0x1c00, v237", [237], []), S_("s_nop 1"),
          V("v_cndmask_b32 v24, v23, v24, vcc", [23, 24], [24]),
          V("v_cmp_le_u32 vcc, 0x2400, v38", [38], []),
          I(f"ds_write_b32 v239, v22 offset:{EOK}", "dsw", rd=[239, 22]), I("ds_write_b32 v24, v22", "dsw", rd=[24, 22]),
          V("v_cndmask_b32 v25, v23, v25, vcc", [23, 25], [25]),
          I("ds_write_b32 v25, v22", "dsw", rd=[25, 22])]
    return L


def epilogue(tau, half):
    F = fin_parts()
    C = [cvt(1, i) for i in range(8)]
    L = [smf(vLINA + 4 * tau, vBP + 8), S_("s_nop 4")] + C + [S_("s_nop 1"), smf(vEOP + 4 * tau, vX), S_("s_nop 7"), F["e"], F["s"], F["x"]]
    if half:
        L += [S_("s_mov_b32 exec_hi, 0")]
    else:
        L += [S_("s_nop 0")]
    L += [F["l"], F["n"]]
    if half:
        L += [S_("s_mov_b32 exec_hi, -1")]
    return L


def main_parts():
    pre = []
    for reg, ad in ((vCEN[0], 220), (vCEN[2], 222), (vCEN[1], 221), (vCEN[3], 223), (vSTR[1], 221)):
        pre += [ldc(reg, ad, 0), ldc(reg, ad, 1)]
    pre += [ldc(vSTR[0], vaS[0], 0), ldc(vSTR[0], vaS[0], 1)]
    for i in range(8):
        pre.append(V(f"v_pk_mul_f16 v{vBP+i}, v{vCEN[2]+i}, v{vCEN[0]+i}", [vCEN[2] + i, vCEN[0] + i], [vBP + i]))
    br0 = S_("s_branch L_slot2")
    br0.fixed = 2
    pre.append(br0)
    sl = [slot(t) for t in range(4)]
    ctl = [S_("s_sub_u32 s60, s60, 1"), S_("s_cmp_lg_u32 s60, 0")]
    if PRIO:
        ctl = [S_("s_sub_u32 s60, s60, 1"), S_(f"s_cmp_lg_u32 s60, {PRIO}"), S_("s_cbranch_scc1 L_keep"), S_("s_setprio 0"), S_("L_keep:"), S_("s_cmp_lg_u32 s60, 0")]
    sl[3] = sl[3][:-4] + ctl + sl[3][-4:] + [S_("s_cbranch_scc1 L_loop")]
    ep3 = epilogue(3, False)
    ep1 = epilogue(1, True)
    body = sl[0] + sl[1] + sl[2] + sl[3]
    paths = []
    for trips in range(0, 3):
        head = pre + sl[2] + sl[3] + body * trips
        paths += [head + ep3, head + sl[0] + sl[1] + ep1]
    auto_waits_paths(paths)
    errs = []
    for p in paths:
        errs += check_hazards(p, "p")
    errs = sorted(set(errs))
    if errs:
        print("\n".join(errs), file=sys.stderr)
        raise SystemExit("hazards")
    return pre, sl, ep3, ep1


def gen():
    tbl = build_tables()
    o = []
    A = o.append
    with open("standalone__factorization_afm__recsys.s.ref") as f:
        for line in f:
            if line.startswith("; @launch"):
                break
            if line.startswith("; Override") or line.startswith("; grid="):
                continue
            A(line.rstrip())
    A(f"; @launch grid=(256,1,1) block=(512,1,1) lds={LDS_TOTAL}")
    A('.amdgcn_target "amdgcn-amd-amdhsa--gfx950"')
    A(".text")
    A(f".globl {KNAME}")
    A(".p2align 8")
    A(f".type {KNAME},@function")
    A(f"{KNAME}:")

    def T(s):
        for l in s.strip("\n").split("\n"):
            l = l.strip()
            if l:
                A(l if l.endswith(":") else "  " + l)

    stamp_n = [0]
    rt_n = [0]

    def stamp(rt=False):
        if DIAG:
            k = stamp_n[0]
            stamp_n[0] += 1
            T(f"s_memtime s[{62+2*k}:{63+2*k}]") if k < 9 else None
            if rt and DIAG == 2:
                T(f"s_memrealtime s[{32+2*rt_n[0]}:{33+2*rt_n[0]}]")
                rt_n[0] += 1

    if DIAG:
        T("s_memrealtime s[98:99]")
    stamp()
    NPF = "(L_pf_end-L_pc+127)/128"
    T(f"""
s_cmp_ge_u32 s2, 256
s_cbranch_scc1 L_end
s_load_dwordx2 s[24:25], s[0:1], 0
s_load_dwordx2 s[28:29], s[0:1], 8
s_load_dwordx8 s[8:15], s[0:1], 32
s_load_dwordx2 s[48:49], s[0:1], 64
s_getpc_b64 s[22:23]
L_pc:
v_lshrrev_b32 v26, 6, v0
v_and_b32 v1, 63, v0
v_and_b32 v27, 15, v0
v_readfirstlane_b32 s52, v26
v_lshl_add_u32 v27, v26, 4, v27
v_lshlrev_b32 v27, 6, v27
v_min_u32 v27, L_pf_end-L_pc-4, v27
s_lshl_b32 s61, s52, 6
s_add_u32 s61, s61, L_tbl-L_pc
global_load_dword v103, v27, s[22:23]
s_lshr_b32 s53, s52, 1
s_and_b32 s54, s52, 1
s_mul_i32 s55, s53, 28
s_cmp_eq_u32 s53, 3
s_cselect_b32 s56, 4, 0
s_sub_u32 s55, s55, s56
s_mul_i32 s56, s2, 1664
s_add_u32 s55, s55, s56
s_mul_i32 s56, s54, 832
s_add_u32 s56, s55, s56
v_lshrrev_b32 v22, 3, v1
v_mul_u32_u24 v113, 104, v22
v_and_b32 v23, 7, v1
v_lshlrev_b32 v114, 4, v23
v_lshlrev_b32 v117, 7, v23
s_mov_b32 s26, 425984
s_mov_b32 s27, 0x20000
s_mov_b32 s30, 128000
s_mov_b32 s31, 0x20000
s_mov_b32 s50, 8192
s_mov_b32 s51, 0x20000
s_lshr_b32 s57, s2, 3
s_and_b32 s57, s57, 15
s_lshl_b32 s57, s57, 3
s_add_u32 s57, s57, s52
s_lshl_b32 s57, s57, 10
s_waitcnt lgkmcnt(0)
buffer_load_dwordx4 v[96:99], v113, s[24:27], s56 offen
buffer_load_dwordx3 v[100:102], v113, s[24:27], s56 offen offset:16
buffer_load_dword v103, v117, s[28:31], s57 offen
""")
    if OUTPF:
        T("s_lshl_b32 s57, s2, 5\nv_mov_b32 v29, s57\nbuffer_load_dword v103, v29, s[48:51], 0 offen")
    T("""
s_load_dwordx16 s[80:95], s[22:23], s61
""")
    stamp()
    T(f"""
s_and_b32 s18, s52, 3
s_mov_b32 s20, {T16}
s_mov_b32 s44, {TRASH}
s_mov_b32 s21, {T32}
s_cmp_eq_u32 s18, 1
s_cselect_b32 s16, s12, s10
s_cselect_b32 s17, s13, s11
s_cselect_b32 s19, {f32bits(HC):#x}, 1.0
s_cselect_b32 s20, {H16}, s20
s_cselect_b32 s45, 1, 0
s_cmp_eq_u32 s18, 2
s_cselect_b32 s16, s14, s16
s_cselect_b32 s17, s15, s17
s_cselect_b32 s20, {P16}, s20
s_cselect_b32 s44, {POK}, s44
s_cmp_eq_u32 s18, 0
s_cselect_b32 s21, {BS}, s21
s_cmp_eq_u32 s18, 3
s_cselect_b32 s21, {BS}, s21
v_lshlrev_b32 v115, 4, v0
v_lshlrev_b32 v116, 1, v1
global_load_dwordx4 v[104:107], v115, s[8:9]
global_load_dwordx4 v[108:111], v114, s[12:13]
global_load_ushort v38, v116, s[16:17]
""")

    def perm(dst, src, lin, t0, t1):
        T(f"""
v_lshrrev_b32 v{t0}, 5, v{src}
v_bfe_u32 v{t1}, v{src}, 3, 1
v_lshl_add_u32 v{dst}, v{t0}, 1, v{t1}
v_bfe_u32 v{t1}, v{src}, 1, 1
v_lshl_add_u32 v{dst}, v{dst}, 1, v{t1}
v_bfe_u32 v{t0}, v{src}, {4 if lin else 2}, 1
v_bfe_u32 v{t1}, v{src}, {2 if lin else 4}, 1
v_lshl_add_u32 v{t1}, v{t0}, 1, v{t1}
v_lshl_add_u32 v{dst}, v{dst}, 2, v{t1}
v_and_b32 v{t1}, 1, v{src}
v_lshl_add_u32 v{dst}, v{dst}, 1, v{t1}
v_lshlrev_b32 v{dst}, 1, v{dst}
""")
    perm(118, 1, True, 26, 27)
    perm(39, 1, False, 26, 27)
    T(f"""
v_lshrrev_b32 v25, 3, v0
s_cmp_lg_u32 s45, 0
s_cselect_b64 s[46:47], -1, 0
v_cndmask_b32 v118, v118, v39, s[46:47]
v_add_u32 v118, s20, v118
""")
    perm(119, 25, True, 26, 27)
    T(f"""
s_mul_i32 s57, s53, {FS}
s_lshl_b32 s58, s54, 7
s_add_u32 s57, s57, s58
s_add_u32 s57, s57, {E16}
v_mul_u32_u24 v30, {PS}, v23
v_lshl_add_u32 v30, v22, 4, v30
v_add_u32 v30, s57, v30
v_lshrrev_b32 v26, 4, v25
v_mul_u32_u24 v25, {WRS}, v25
v_lshl_add_u32 v25, v26, 5, v25
v_add_u32 v25, v25, v114
v_lshlrev_b32 v24, 2, v1
v_mov_b32 v26, 0
ds_write_b32 v24, v26 offset:{CELL}
v_add_u32 v24, s21, v24
""")
    for k in range(8):
        T(f"v_mov_b64 v[{vACC+16+2*k}:{vACC+17+2*k}], 0")
    for k in range(4):
        T(f"v_mov_b64 v[{vBP+8+2*k}:{vBP+9+2*k}], 0")
    for r in (vLINA, vLINA + 2, vEOP, vEOP + 2):
        T(f"v_mov_b64 v[{r}:{r+1}], 0")
    T(f"""
v_lshrrev_b32 v31, 4, v1
v_and_b32 v32, 15, v1
v_lshrrev_b32 v216, 2, v32
v_lshl_add_u32 v216, v31, 4, v216
v_mul_u32_u24 v216, {WRS}, v216
v_lshl_add_u32 v216, v31, 5, v216
v_and_b32 v26, 3, v1
v_lshl_add_u32 v216, v26, 3, v216
v_lshlrev_b32 v217, 4, v31
v_bfe_u32 v26, v1, 4, 1
v_lshrrev_b32 v27, 5, v1
v_bfe_u32 v28, v1, 1, 1
v_lshl_add_u32 v218, v26, 1, v27
v_lshl_add_u32 v218, v218, 1, v28
v_lshlrev_b32 v218, 4, v218
v_lshl_add_u32 v219, v27, 1, v26
v_lshl_add_u32 v219, v219, 1, v28
v_lshlrev_b32 v219, 4, v219
v_add_u32 v219, {H16}, v219
s_mov_b32 s32, 0xaaaaaaaa
s_mov_b32 s33, 0xaaaaaaaa
s_mov_b32 s34, 0xcccccccc
s_mov_b32 s35, 0xcccccccc
v_mov_b32 v26, {U16}
v_mov_b32 v27, {P16}
v_cndmask_b32 v26, v26, v27, s[32:33]
v_add_u32 v218, v218, v26
v_mov_b32 v26, 0x44444444
v_mov_b32 v27, 0xeeeeeeee
v_cndmask_b32 v{vIDX}, v26, v27, s[34:35]
v_mul_u32_u24 v{vLANE}, {2*PS}, v31
v_lshl_add_u32 v{vLANE}, v32, 4, v{vLANE}
v_add_u32 v{vLANE}, {E16}, v{vLANE}
s_waitcnt lgkmcnt(0)
""")
    for k, (ra, rb) in enumerate([(220, 221), (222, 223), (vaS[0], vaS[1])]):
        T(f"s_and_b32 s57, s{80+k}, 0xffff\ns_lshr_b32 s58, s{80+k}, 16\nv_add_u32 v{ra}, s57, v{vLANE}\nv_add_u32 v{rb}, s58, v{vLANE}")
    T("s_mov_b32 m0, 0\ns_mov_b32 s60, s93")
    T(f"""
s_mov_b32 s58, -1
s_mov_b32 s59, s94
v_mov_b32 v{vD+1}, 0xff800000
v_mov_b64 v[{vD+2}:{vD+3}], 0
v_cndmask_b32 v{vD}, 0, v{vD+1}, s[58:59]
v_mov_b32 v{vD+1}, 0
v_mov_b64 v[{vL}:{vL+1}], 0
s_waitcnt vmcnt({4 + OUTPF})
""")
    stamp()
    G = 48

    def gather(t):
        T(f"buffer_load_dwordx4 v[{G+4*t}:{G+4*t+3}], v{96+t}, s[28:31], 0 offen")
    for t in range(7):
        T(f"v_lshl_add_u32 v{96+t}, v{96+t}, 7, v114")
        if t < NFIRST:
            gather(t)
    T(f"s_waitcnt vmcnt({NFIRST})")
    T("v_dot2_f32_bf16 v236, v104, v108, 0")
    for i in range(4):
        T(f"v_lshlrev_b32 v{224+2*i}, 16, v{104+i}\nv_and_b32 v{225+2*i}, 0xffff0000, v{104+i}")
        if i < 3:
            T(f"v_dot2_f32_bf16 v236, v{105+i}, v{109+i}, v236")
    T("v_lshlrev_b32 v38, 16, v38")
    for i in range(4):
        T(f"v_cvt_pk_f16_f32 v{232+i}, v{224+2*i}, v{225+2*i}")
    T(f"""
v_add_f32_dpp v236, v236, v236 quad_perm:[1,0,3,2] row_mask:0xf bank_mask:0xf
ds_write_b128 v25, v[232:235] offset:{WOFF}
ds_write_b32 v24, v38
v_add_f32_dpp v236, v236, v236 quad_perm:[2,3,0,1] row_mask:0xf bank_mask:0xf
v_mul_f32 v38, s19, v38
s_nop 0
v_add_f32_dpp v236, v236, v236 row_half_mirror row_mask:0xf bank_mask:0xf
v_cvt_f16_f32 v38, v38
v_mul_f32 v236, {f32bits(HC):#x}, v236
ds_write_b16 v118, v38
v_cvt_f16_f32 v236, v236
ds_write_b16 v119, v236 offset:{U16}
s_waitcnt lgkmcnt(0)
s_barrier
""")
    stamp()
    rd = []
    for mt in range(4):
        for k in range(2):
            for hf in range(2):
                r = vW + (mt * 2 + k) * 4 + 2 * hf
                rd.append(f"ds_read_b64_tr_b16 v[{r}:{r+1}], v216 offset:{WOFF + (8*k+4*hf)*WRS + mt*32}")
    for mt in range(4):
        r = vBIAS + 4 * mt
        rd.append(f"ds_read_b128 v[{r}:{r+3}], v217 offset:{BS + 64*mt}")
    T(f"""
s_mov_b32 exec_lo, 0x000f000f
s_mov_b32 exec_hi, 0x000f000f
ds_read_b128 v[{vLINA}:{vLINA+3}], v218
s_mov_b32 exec_lo, 0x00050005
s_mov_b32 exec_hi, 0x00050005
ds_read_b128 v[{vEOP}:{vEOP+3}], v219
s_mov_b64 exec, -1
""")
    rest = list(range(NFIRST, 7))
    per = -(-len(rd) // max(1, len(rest)))
    for t in rest:
        gather(t)
        for x in rd[:per]:
            T(x)
        rd = rd[per:]
    for x in rd:
        T(x)

    def conv(t):
        g = G + 4 * t
        T(f"s_waitcnt vmcnt({6-t})")
        for i in range(4):
            T(f"v_lshlrev_b32 v{224+2*i}, 16, v{g+i}\nv_and_b32 v{225+2*i}, 0xffff0000, v{g+i}")
        for i in range(4):
            T(f"v_cvt_pk_f16_f32 v{g+i}, v{224+2*i}, v{225+2*i}")
        T(f"ds_write_b128 v30, v[{g}:{g+3}] offset:{t*4*FS}")
    conv(0)
    T("s_waitcnt lgkmcnt(15)")
    for tau in range(1, 4):
        for base in (vLINA, vEOP):
            for rho in range(4):
                T(f"v_mov_b32_dpp v{base+4*tau+rho}, v{base+rho} row_shr:{4*tau} row_mask:0xf bank_mask:0xf bound_ctrl:0")
    conv(1)
    o.extend(emit(flags()))
    conv(2); conv(3)
    stamp()
    conv(4); conv(5)
    T("s_cmp_ge_u32 s53, 2\ns_cbranch_scc1 L_skip6")
    conv(6)
    T("L_skip6:")
    if PRIO:
        T("s_cmp_lt_u32 s52, 4\ns_cbranch_scc1 L_noprio\ns_setprio 1\nL_noprio:")
    T("s_waitcnt vmcnt(0) lgkmcnt(0)\ns_barrier")
    stamp(True)
    pre, sl, ep3, ep1 = main_parts()
    o += emit(pre)
    A(".p2align 6")
    A("L_loop:")
    o += emit(sl[0])
    o += emit(sl[1])
    A("L_slot2:")
    o += emit(sl[2])
    o += emit(sl[3])
    o += emit(ep3)
    T("L_tail:")
    stamp(True)
    SCR = WOFF
    T(f"""
v_lshrrev_b32 v12, 4, v0
v_mul_u32_u24 v12, 17, v12
v_and_b32 v13, 15, v0
v_add_lshl_u32 v12, v12, v13, 3
ds_write_b64 v12, v[{vL}:{vN}] offset:{SCR}
v_and_b32 v13, 31, v1
v_mul_u32_u24 v13, 17, v13
v_lshrrev_b32 v14, 5, v1
s_lshl_b32 s57, s52, 1
v_add_u32 v14, s57, v14
v_add_lshl_u32 v13, v13, v14, 3
v_lshlrev_b32 v15, 2, v14
v_mov_b32 v19, 0
s_lshl_b32 s57, s2, 4
v_add_u32 v14, s57, v14
v_lshlrev_b32 v14, 1, v14
v_mov_b32 v26, 0x1f800000
v_mov_b32 v27, 0x71800000
v_mov_b32 v25, 0x207
v_and_b32 v28, 31, v1
s_waitcnt lgkmcnt(0)
s_barrier
""")
    stamp()
    T(f"""
ds_read_b64 v[16:17], v13 offset:{SCR}
ds_read_b32 v18, v15 offset:{EOK}
ds_read_b64 v[20:21], v19 offset:{WOK}
v_cmp_eq_u32 s[58:59], 0, v28
s_waitcnt lgkmcnt(2)
""")
    for d in ["quad_perm:[1,0,3,2]", "quad_perm:[2,3,0,1]", "row_half_mirror", "row_mirror"]:
        T(f"v_add_f32_dpp v16, v16, v16 {d} row_mask:0xf bank_mask:0xf\nv_add_f32_dpp v17, v17, v17 {d} row_mask:0xf bank_mask:0xf\ns_nop 0")
    T(f"""
v_mov_b32 v22, v16
v_mov_b32 v23, v17
s_nop 0
v_permlane16_swap_b32 v16, v22
v_permlane16_swap_b32 v17, v23
s_mov_b64 exec, s[58:59]
v_add_f32 v16, v16, v22
v_add_f32 v17, v17, v23
v_rcp_f32 v22, v16
v_med3_f32 v26, v16, v26, v27
v_mul_f32 v17, v17, v22
v_cmp_neq_f32 vcc, v26, v16
v_cvt_pk_bf16_f32 v24, v17, v17
v_cmp_class_f32 s[46:47], v17, v25
buffer_store_short v24, v14, s[48:51], 0 offen
s_waitcnt lgkmcnt(0)
v_and_b32 v18, v18, v20
v_and_b32 v18, v18, v21
v_cmp_eq_u32 s[44:45], 0, v18
@DIAG@
s_or_b64 s[46:47], s[46:47], vcc
s_or_b64 s[44:45], s[44:45], s[46:47]
s_and_b64 s[44:45], s[44:45], exec
s_cbranch_scc1 L_slow
L_end:
s_endpgm
L_ep1:
""")
    o += emit(ep1)
    T("s_branch L_tail\nL_pf_end:")
    T("""
L_slow:
s_mov_b64 exec, -1
v_lshlrev_b32 v2, 1, v1
v_add_u32 v3, 4096, v2
""")
    for d in range(64):
        T(f"global_load_ushort v{128+d}, v{2 if d < 32 else 3}, s[8:9] offset:{(d % 32) * 128}")
    T(f"""
global_load_ushort v100, v2, s[10:11]
global_load_ushort v101, v2, s[12:13]
global_load_ushort v102, v2, s[14:15]
s_mul_i32 s36, s52, 6656
s_add_u32 s36, s36, {E16}
v_lshlrev_b32 v4, 2, v1
v_add_u32 v4, s36, v4
s_waitcnt vmcnt(0)
""")
    for d in range(64):
        T(f"v_lshlrev_b32 v{128+d}, 16, v{128+d}")
    T("""
v_lshlrev_b32 v100, 16, v100
v_lshlrev_b32 v101, 16, v101
v_lshlrev_b32 v102, 16, v102
s_mov_b32 s37, 0
L_slow_b:
s_cmp_eq_u32 s37, 0
s_cselect_b32 s38, s44, s45
s_cmp_eq_u32 s38, 0
s_cbranch_scc1 L_slow_next
s_lshl_b32 s39, s2, 4
s_lshl_b32 s40, s52, 1
s_add_u32 s39, s39, s40
s_add_u32 s39, s39, s37
s_mul_i32 s40, s39, 104
v_lshlrev_b32 v5, 2, v1
buffer_load_dword v6, v5, s[24:27], s40 offen
s_mov_b32 s41, 0
v_mov_b32 v7, v4
s_waitcnt vmcnt(0)
L_slow_rows:
v_readlane_b32 s42, v6, s41
s_nop 3
s_lshl_b32 s42, s42, 7
buffer_load_ushort v8, v2, s[28:31], s42 offen
s_waitcnt vmcnt(0)
v_lshlrev_b32 v8, 16, v8
ds_write_b32 v7, v8
v_add_u32 v7, 256, v7
s_add_u32 s41, s41, 1
s_cmp_lt_u32 s41, 26
s_cbranch_scc1 L_slow_rows
v_mov_b32 v110, 0xff800000
v_mov_b32 v111, 0
v_mov_b32 v112, 0
s_mov_b32 s41, 0
s_waitcnt lgkmcnt(0)
L_slow_i:
s_lshl_b32 s42, s41, 8
v_add_u32 v7, s42, v4
ds_read_b32 v103, v7
s_add_u32 s43, s41, 1
L_slow_j:
s_lshl_b32 s42, s43, 8
v_add_u32 v7, s42, v4
ds_read_b32 v104, v7
s_waitcnt lgkmcnt(0)
v_mul_f32 v105, v103, v104
v_cvt_pk_bf16_f32 v105, v105, v105
v_lshlrev_b32 v105, 16, v105
v_mov_b32 v106, v100
v_mul_f32 v107, v105, v102
""")
    for g in range(8):
        for k in range(8):
            T(f"v_readlane_b32 s{64+k}, v105, {8*g+k}")
        for k in range(8):
            T(f"v_fma_f32 v106, s{64+k}, v{128+8*g+k}, v106")
    T("v_max_f32 v106, 0, v106\nv_mul_f32 v106, v106, v101\ns_nop 1")
    for dd in ["quad_perm:[1,0,3,2]", "quad_perm:[2,3,0,1]", "row_half_mirror", "row_mirror"]:
        T(f"v_add_f32_dpp v106, v106, v106 {dd} row_mask:0xf bank_mask:0xf\nv_add_f32_dpp v107, v107, v107 {dd} row_mask:0xf bank_mask:0xf\ns_nop 0")
    for sw in ("v_permlane16_swap_b32", "v_permlane32_swap_b32"):
        T(f"""
v_mov_b32 v108, v106
v_mov_b32 v109, v107
s_nop 1
{sw} v106, v108
{sw} v107, v109
s_nop 1
v_add_f32 v106, v106, v108
v_add_f32 v107, v107, v109
""")
    T(f"""
v_mul_f32 v106, {f32bits(LOG2E):#x}, v106
v_max_f32 v108, v110, v106
v_sub_f32 v109, v110, v108
v_sub_f32 v106, v106, v108
v_exp_f32 v109, v109
v_exp_f32 v106, v106
v_mov_b32 v110, v108
s_nop 0
v_mul_f32 v111, v111, v109
v_mul_f32 v112, v112, v109
v_add_f32 v111, v111, v106
v_fma_f32 v112, v106, v107, v112
s_add_u32 s43, s43, 1
s_cmp_lt_u32 s43, 26
s_cbranch_scc1 L_slow_j
s_add_u32 s41, s41, 1
s_cmp_lt_u32 s41, 25
s_cbranch_scc1 L_slow_i
v_rcp_f32 v111, v111
s_lshl_b32 s39, s39, 1
v_mov_b32 v7, s39
v_mul_f32 v112, v112, v111
v_cvt_pk_bf16_f32 v112, v112, v112
s_waitcnt vmcnt(0)
s_mov_b64 exec, 1
buffer_store_short v112, v7, s[48:51], 0 offen
s_mov_b64 exec, -1
L_slow_next:
s_add_u32 s37, s37, 1
s_cmp_lt_u32 s37, 2
s_cbranch_scc1 L_slow_b
s_endpgm
""")
    if DIAG:
        ns = min(stamp_n[0], 9) - (0 if stamp_n[0] < 9 else 1)
        d = [f"s_memtime s[{62+2*ns}:{63+2*ns}]", "s_memrealtime s[96:97]", "s_load_dwordx2 s[40:41], s[0:1], 80", "s_waitcnt lgkmcnt(0)",
             "s_mov_b64 s[100:101], exec", "s_mov_b64 exec, 1", "s_lshl_b32 s42, s2, 3", "s_add_u32 s42, s42, s52", "s_lshl_b32 s42, s42, 6", "v_mov_b32 v2, s42",
             "v_mov_b32 v3, s98", "global_store_dword v2, v3, s[40:41]", "v_mov_b32 v3, s96", "global_store_dword v2, v3, s[40:41] offset:4"]
        for k in range(1, ns + 1):
            d += [f"s_sub_u32 s42, s{62+2*k}, s62", "v_mov_b32 v3, s42", f"global_store_dword v2, v3, s[40:41] offset:{4+4*k}"]
        d += ["s_getreg_b32 s42, hwreg(HW_REG_HW_ID)", "v_mov_b32 v3, s42", "global_store_dword v2, v3, s[40:41] offset:56"]
        for k in range(rt_n[0]):
            d += [f"s_sub_u32 s42, s{32+2*k}, s98", "v_mov_b32 v3, s42", f"global_store_dword v2, v3, s[40:41] offset:{44+4*k}"]
        d += ["s_mov_b64 exec, s[100:101]"]
        assert 62 + 2 * ns + 1 < 80
        txt = "\n".join("  " + x for x in d)
    else:
        txt = ""
    o[:] = [txt if l.strip() == "@DIAG@" else l for l in o]
    A(".p2align 6")
    A(".type L_tbl,@object")
    A("L_tbl:")
    for k in range(0, len(tbl), 16):
        A("  .long " + ", ".join(f"{x:#x}" for x in tbl[k:k + 16]))
    A('.section .rodata,"a"')
    A(".p2align 6")
    A(f".amdhsa_kernel {KNAME}")
    A("""  .amdhsa_next_free_vgpr 256
  .amdhsa_next_free_sgpr 102
  .amdhsa_accum_offset 256
  .amdhsa_group_segment_fixed_size 0
  .amdhsa_kernarg_size 88
  .amdhsa_user_sgpr_count 2
  .amdhsa_user_sgpr_kernarg_segment_ptr 1
  .amdhsa_system_sgpr_workgroup_id_x 1
.end_amdhsa_kernel""")
    return "\n".join(o) + "\n"


if __name__ == "__main__":
    for a in list(sys.argv):
        for key in ("prio", "nfirst", "outpf"):
            if a.startswith(f"--{key}="):
                globals()[key.upper()] = int(a.split("=")[1])
                sys.argv.remove(a)
    if "--diag" in sys.argv:
        DIAG = 1
        sys.argv.remove("--diag")
    if "--diag2" in sys.argv:
        DIAG = 2
        sys.argv.remove("--diag2")
    out = sys.argv[1] if len(sys.argv) > 1 else "standalone__factorization_afm__recsys.s"
    open(out, "w").write(gen())
    print("wrote", out)
```

```python
import sys, struct
from asmkit import I, vr, auto_waits_paths, check_hazards, emit
import sched3

KNAME = "standalone__factorization_afm__recsys_kernel"

FS = 2176
PS = 272
CELL = 0
EOK = CELL
WOK = CELL + 64
POK = CELL + 68
TRASH = CELL + 72
SUM = CELL + 128
BS = 512
U16 = 768
P16 = 896
H16 = 1024
T16 = 1152
T32 = 1280
WOFF = 2048
WRS = 192
E16 = WOFF + 64 * WRS + 128
LDS_TOTAL = E16 + 26 * FS

vW, vBIAS, vLINA, vEOP, vX, vACC = 128, 160, 176, 192, 208, 224
vBP = 112
vCEN = [64, 72, 80, 88]
vSTR = [96, 104]
vD, vIDX = 44, 43
vE, vS = 36, 37
vL, vN = 34, 35
vWt = 33
NIT = 10
vaS = [40, 41]
vLANE = 42

LOG2E = 1.4426950408889634
HC = 0.5 * LOG2E
DIAG = 0
PRIO = 3
NFIRST = 3
OUTPF = 0


def f32bits(x):
    return struct.unpack("<I", struct.pack("<f", x))[0]


def build_tables():
    W, half = sched3.schedule()
    sched3.check(W, half)
    data = []
    for (r0, r1), h in zip(W, half):
        pk = lambda a, b: (a * FS) | ((b * FS) << 16)
        ent = [pk(2 * r0[0], 2 * r1[0]), pk(2 * r0[0] + 1, 2 * r1[0] + 1)]
        for k in range(NIT + 1):
            kk = min(k, NIT - 1)
            ent.append(pk(r0[2][kk], r1[2][kk]))
        ent.append(NIT + 1)
        ent.append((0 if r0[1] else 0x0000ffff) | (0 if r1[1] else 0xffff0000))
        ent.append(1 if h else 0xffff)
        assert len(ent) == 16
        data += ent
    return data


def mfma(par, mt, k):
    acc = vACC + 16 * par + 4 * mt
    a = vW + (mt * 2 + k) * 4
    b = vBP + 8 * par + 4 * k
    c = (vBIAS + 4 * mt) if k == 0 else acc
    return I(f"v_mfma_f32_16x16x32_f16 {vr(acc,4)}, {vr(a,4)}, {vr(b,4)}, {vr(c,4)}", "mfma4",
             rd=list(range(a, a + 4)) + list(range(b, b + 4)), wr=range(acc, acc + 4), srcc=range(c, c + 4))


def smf(a, b):
    return I(f"v_smfmac_f32_16x16x64_f16 {vr(vD,4)}, {vr(a,4)}, {vr(b,8)}, v{vIDX}", "mfma4",
             rd=list(range(a, a + 4)) + list(range(b, b + 8)) + [vIDX], wr=range(vD, vD + 4), srcc=range(vD, vD + 4))


def prod(tau, i):
    d = vBP + 8 * (tau & 1) + i
    h = vCEN[tau] + i
    s = vSTR[tau & 1] + i
    return I(f"v_pk_mul_f16 v{d}, v{h}, v{s}", "valu", rd=[h, s], wr=[d])


def cvt(par, i):
    x = vACC + 16 * par + 2 * i
    return I(f"v_cvt_pk_f16_f32 v{vX+i}, |v{x}|, |v{x+1}|", "valu", rd=[x, x + 1], wr=[vX + i])


def ldc(dst, addr, c):
    return I(f"ds_read_b128 {vr(dst+4*c,4)}, v{addr} offset:{c*PS}", "dsr", rd=[addr], wr=range(dst + 4 * c, dst + 4 * c + 4))


def V(text, rd, wr, kind="valu"):
    return I(text, kind, rd=rd, wr=wr)


def S_(text):
    return I(text, "salu")


def fin_parts():
    return dict(
        e=V(f"v_add_f32 v{vE}, v{vD}, v{vD+2}", [vD, vD + 2], [vE]),
        s=V(f"v_add_f32 v{vS}, v{vD+1}, v{vD+3}", [vD + 1, vD + 3], [vS]),
        z0=V(f"v_mov_b64 {vr(vD,2)}, 0", [], [vD, vD + 1]),
        z1=V(f"v_mov_b64 {vr(vD+2,2)}, 0", [], [vD + 2, vD + 3]),
        x=V(f"v_exp_f32 v{vWt}, v{vE}", [vE], [vWt], "trans"),
        l=V(f"v_add_f32 v{vL}, v{vL}, v{vWt}", [vL, vWt], [vL]),
        n=V(f"v_fma_f32 v{vN}, v{vWt}, v{vS}, v{vN}", [vWt, vS, vN], [vN]))


def slot(tau):
    par = tau & 1
    prev = (tau + 3) % 4
    nxt = (tau + 1) % 4
    M = lambda mt, k: mfma(par, mt, k)
    C = [cvt(1 - par, i) for i in range(8)]
    P = [prod(nxt, i) for i in range(8)]
    P[0].rd |= set(range(vSTR[nxt & 1], vSTR[nxt & 1] + 8))
    SL = smf(vLINA + 4 * prev, vBP + 8 * (1 - par))
    SE = smf(vEOP + 4 * prev, vX)
    F = fin_parts()
    t0 = lambda x: x if tau == 0 else []
    t1 = lambda x: x if tau == 1 else []
    mov = [S_("s_movrels_b32 s57, s83"), S_("s_add_u32 m0, m0, 1")]
    spl = [S_("s_and_b32 s58, s57, 0xffff"), S_("s_lshr_b32 s59, s57, 16")]
    adr = [V(f"v_add_u32 v{vaS[0]}, s58, v{vLANE}", [vLANE], [vaS[0]]), V(f"v_add_u32 v{vaS[1]}, s59, v{vLANE}", [vLANE], [vaS[1]])]
    lds = []
    if tau == 1:
        lds = [ldc(vSTR[0], vaS[0], 0), ldc(vSTR[0], vaS[0], 1)]
    if tau == 2:
        lds = [ldc(vSTR[1], vaS[1], 0), ldc(vSTR[1], vaS[1], 1)]
    L = [M(0, 0), C[0], C[1]] + t1([F["x"]]) + [SL] + t0(mov) + t1([F["l"]]) + [M(0, 1), C[2], C[3]]
    L += [M(1, 0), C[4], C[5]] + t0(spl) + [M(1, 1), C[6], C[7]]
    L += [M(2, 0), P[0], P[1], SE] + t0(adr) + t1([F["n"]]) + [M(2, 1), P[2], P[3]]
    L += [M(3, 0), P[4], P[5]] + t1([S_("s_cmp_eq_u32 s60, s95")]) + [M(3, 1), P[6], P[7]]
    L += t0([S_("s_nop 0"), F["e"], F["s"], F["z0"], F["z1"]]) + lds
    if tau == 1:
        L += [S_("s_cbranch_scc1 L_ep1")]
    return L


def flags():
    G = 48
    L = [V(f"v_and_b32 v238, 0x7fff7fff, v{G}", [G], [238]), V("v_and_b32 v237, 0x7fff7fff, v232", [232], [237]),
         V("v_and_b32 v38, 0x7fff, v38", [38], [38]),
         V("v_lshrrev_b32 v239, 3, v1", [1], [239]),
         V("v_max_u16_sdwa v238, v238, v238 dst_sel:DWORD dst_unused:UNUSED_PAD src0_sel:WORD_0 src1_sel:WORD_1", [238], [238]),
         V("v_max_u16_sdwa v237, v237, v237 dst_sel:DWORD dst_unused:UNUSED_PAD src0_sel:WORD_0 src1_sel:WORD_1", [237], [237]),
         S_("s_lshl_b32 s57, s54, 5"),
         V("v_lshl_add_u32 v239, v239, 2, s57", [239], [239]),
         V("v_mov_b32 v22, 1", [], [22]), V(f"v_mov_b32 v23, {TRASH}", [], [23]),
         V("v_cmp_le_u32 vcc, 0x2800, v238", [238], []), V(f"v_mov_b32 v24, {WOK}", [], [24]), V("v_mov_b32 v25, s44", [], [25]),
         V("v_cndmask_b32 v239, v23, v239, vcc", [23, 239], [239]),
         V("v_cmp_le_u32 vcc, 0x1c00, v237", [237], []), S_("s_nop 1"),
         V("v_cndmask_b32 v24, v23, v24, vcc", [23, 24], [24]),
         V("v_cmp_le_u32 vcc, 0x2400, v38", [38], []),
         I(f"ds_write_b32 v239, v22 offset:{EOK}", "dsw", rd=[239, 22]), I("ds_write_b32 v24, v22", "dsw", rd=[24, 22]),
         V("v_cndmask_b32 v25, v23, v25, vcc", [23, 25], [25]),
         I("ds_write_b32 v25, v22", "dsw", rd=[25, 22])]
    return L


def epilogue(tau, half):
    F = fin_parts()
    C = [cvt(1, i) for i in range(8)]
    L = [smf(vLINA + 4 * tau, vBP + 8), S_("s_nop 4")] + C + [S_("s_nop 1"), smf(vEOP + 4 * tau, vX), S_("s_nop 7"), F["e"], F["s"], F["x"]]
    if half:
        L += [S_("s_mov_b32 exec_hi, 0")]
    else:
        L += [S_("s_nop 0")]
    L += [F["l"], F["n"]]
    if half:
        L += [S_("s_mov_b32 exec_hi, -1")]
    return L


def main_parts():
    pre = []
    for reg, ad in ((vCEN[0], 220), (vCEN[2], 222), (vCEN[1], 221), (vCEN[3], 223), (vSTR[1], 221)):
        pre += [ldc(reg, ad, 0), ldc(reg, ad, 1)]
    pre += [ldc(vSTR[0], vaS[0], 0), ldc(vSTR[0], vaS[0], 1)]
    pre += flags()
    for i in range(8):
        pre.append(V(f"v_pk_mul_f16 v{vBP+i}, v{vCEN[2]+i}, v{vCEN[0]+i}", [vCEN[2] + i, vCEN[0] + i], [vBP + i]))
    br0 = S_("s_branch L_slot2")
    br0.fixed = 5
    pre.append(br0)
    sl = [slot(t) for t in range(4)]
    ctl = [S_("s_sub_u32 s60, s60, 1"), S_("s_cmp_lg_u32 s60, 0")]
    if PRIO:
        ctl = [S_("s_sub_u32 s60, s60, 1"), S_(f"s_cmp_lg_u32 s60, {PRIO}"), S_("s_cbranch_scc1 L_keep"), S_("s_setprio 0"), S_("L_keep:"), S_("s_cmp_lg_u32 s60, 0")]
    sl[3] = sl[3][:-4] + ctl + sl[3][-4:] + [S_("s_cbranch_scc1 L_loop")]
    ep3 = epilogue(3, False)
    ep1 = epilogue(1, True)
    body = sl[0] + sl[1] + sl[2] + sl[3]
    paths = []
    for trips in range(0, 3):
        head = pre + sl[2] + sl[3] + body * trips
        paths += [head + ep3, head + sl[0] + sl[1] + ep1]
    auto_waits_paths(paths)
    errs = []
    for p in paths:
        errs += check_hazards(p, "p")
    errs = sorted(set(errs))
    if errs:
        print("\n".join(errs), file=sys.stderr)
        raise SystemExit("hazards")
    return pre, sl, ep3, ep1


def gen():
    tbl = build_tables()
    o = []
    A = o.append
    with open("standalone__factorization_afm__recsys.s.ref") as f:
        for line in f:
            if line.startswith("; @launch"):
                break
            if line.startswith("; Override") or line.startswith("; grid="):
                continue
            A(line.rstrip())
    A(f"; @launch grid=(256,1,1) block=(512,1,1) lds={LDS_TOTAL}")
    A('.amdgcn_target "amdgcn-amd-amdhsa--gfx950"')
    A(".text")
    A(f".globl {KNAME}")
    A(".p2align 8")
    A(f".type {KNAME},@function")
    A(f"{KNAME}:")

    def T(s):
        for l in s.strip("\n").split("\n"):
            l = l.strip()
            if l:
                A(l if l.endswith(":") else "  " + l)

    stamp_n = [0]
    rt_n = [0]

    def stamp(rt=False):
        if DIAG:
            k = stamp_n[0]
            stamp_n[0] += 1
            T(f"s_memtime s[{62+2*k}:{63+2*k}]") if k < 9 else None
            if rt and DIAG >= 2:
                T(f"s_memrealtime s[{32+2*rt_n[0]}:{33+2*rt_n[0]}]")
                rt_n[0] += 1

    if DIAG:
        T("s_memrealtime s[98:99]")
    stamp()
    NPF = "(L_pf_end-L_pc+127)/128"
    T(f"""
s_cmp_ge_u32 s2, 256
s_cbranch_scc1 L_end
s_load_dwordx2 s[24:25], s[0:1], 0
s_load_dwordx2 s[28:29], s[0:1], 8
s_load_dwordx8 s[8:15], s[0:1], 32
s_load_dwordx2 s[48:49], s[0:1], 64
s_getpc_b64 s[22:23]
L_pc:
v_lshrrev_b32 v26, 6, v0
v_and_b32 v1, 63, v0
v_and_b32 v27, 15, v0
v_readfirstlane_b32 s52, v26
v_lshl_add_u32 v27, v26, 4, v27
v_lshlrev_b32 v27, 6, v27
v_min_u32 v27, L_pf_end-L_pc-4, v27
s_lshl_b32 s61, s52, 6
s_add_u32 s61, s61, L_tbl-L_pc
global_load_dword v103, v27, s[22:23]
s_lshr_b32 s53, s52, 1
s_and_b32 s54, s52, 1
s_mul_i32 s55, s53, 28
s_cmp_eq_u32 s53, 3
s_cselect_b32 s56, 4, 0
s_sub_u32 s55, s55, s56
s_mul_i32 s56, s2, 1664
s_add_u32 s55, s55, s56
s_mul_i32 s56, s54, 832
s_add_u32 s56, s55, s56
v_lshrrev_b32 v22, 3, v1
v_mul_u32_u24 v113, 104, v22
v_and_b32 v23, 7, v1
v_lshlrev_b32 v114, 4, v23
v_lshlrev_b32 v117, 7, v23
s_mov_b32 s26, 425984
s_mov_b32 s27, 0x20000
s_mov_b32 s30, 128000
s_mov_b32 s31, 0x20000
s_mov_b32 s50, 8192
s_mov_b32 s51, 0x20000
s_lshr_b32 s57, s2, 3
s_and_b32 s57, s57, 15
s_lshl_b32 s57, s57, 3
s_add_u32 s57, s57, s52
s_lshl_b32 s57, s57, 10
s_waitcnt lgkmcnt(0)
buffer_load_dwordx4 v[96:99], v113, s[24:27], s56 offen
buffer_load_dwordx3 v[100:102], v113, s[24:27], s56 offen offset:16
buffer_load_dword v103, v117, s[28:31], s57 offen
""")
    if OUTPF:
        T("s_lshl_b32 s57, s2, 5\nv_mov_b32 v29, s57\nbuffer_load_dword v103, v29, s[48:51], 0 offen")
    T("""
s_load_dwordx16 s[80:95], s[22:23], s61
""")
    stamp()
    T(f"""
s_and_b32 s18, s52, 3
s_mov_b32 s20, {T16}
s_mov_b32 s44, {TRASH}
s_mov_b32 s21, {T32}
s_cmp_eq_u32 s18, 1
s_cselect_b32 s16, s12, s10
s_cselect_b32 s17, s13, s11
s_cselect_b32 s19, {f32bits(HC):#x}, 1.0
s_cselect_b32 s20, {H16}, s20
s_cselect_b32 s45, 1, 0
s_cmp_eq_u32 s18, 2
s_cselect_b32 s16, s14, s16
s_cselect_b32 s17, s15, s17
s_cselect_b32 s20, {P16}, s20
s_cselect_b32 s44, {POK}, s44
s_cmp_eq_u32 s18, 0
s_cselect_b32 s21, {BS}, s21
s_cmp_eq_u32 s18, 3
s_cselect_b32 s21, {BS}, s21
v_lshlrev_b32 v115, 4, v0
v_lshlrev_b32 v116, 1, v1
global_load_dwordx4 v[104:107], v115, s[8:9]
global_load_dwordx4 v[108:111], v114, s[12:13]
global_load_ushort v38, v116, s[16:17]
""")

    def perm(dst, src, lin, t0, t1):
        T(f"""
v_lshrrev_b32 v{t0}, 5, v{src}
v_bfe_u32 v{t1}, v{src}, 3, 1
v_lshl_add_u32 v{dst}, v{t0}, 1, v{t1}
v_bfe_u32 v{t1}, v{src}, 1, 1
v_lshl_add_u32 v{dst}, v{dst}, 1, v{t1}
v_bfe_u32 v{t0}, v{src}, {4 if lin else 2}, 1
v_bfe_u32 v{t1}, v{src}, {2 if lin else 4}, 1
v_lshl_add_u32 v{t1}, v{t0}, 1, v{t1}
v_lshl_add_u32 v{dst}, v{dst}, 2, v{t1}
v_and_b32 v{t1}, 1, v{src}
v_lshl_add_u32 v{dst}, v{dst}, 1, v{t1}
v_lshlrev_b32 v{dst}, 1, v{dst}
""")
    perm(118, 1, True, 26, 27)
    perm(39, 1, False, 26, 27)
    T(f"""
v_lshrrev_b32 v25, 3, v0
s_cmp_lg_u32 s45, 0
s_cselect_b64 s[46:47], -1, 0
v_cndmask_b32 v118, v118, v39, s[46:47]
v_add_u32 v118, s20, v118
""")
    perm(119, 25, True, 26, 27)
    T(f"""
s_mul_i32 s57, s53, {FS}
s_lshl_b32 s58, s54, 7
s_add_u32 s57, s57, s58
s_add_u32 s57, s57, {E16}
v_mul_u32_u24 v30, {PS}, v23
v_lshl_add_u32 v30, v22, 4, v30
v_add_u32 v30, s57, v30
v_lshrrev_b32 v26, 4, v25
v_mul_u32_u24 v25, {WRS}, v25
v_lshl_add_u32 v25, v26, 5, v25
v_add_u32 v25, v25, v114
v_lshlrev_b32 v24, 2, v1
v_mov_b32 v26, 0
ds_write_b32 v24, v26 offset:{CELL}
v_add_u32 v24, s21, v24
""")
    for k in range(8):
        T(f"v_mov_b64 v[{vACC+16+2*k}:{vACC+17+2*k}], 0")
    for k in range(4):
        T(f"v_mov_b64 v[{vBP+8+2*k}:{vBP+9+2*k}], 0")
    for r in (vLINA, vLINA + 2, vEOP, vEOP + 2):
        T(f"v_mov_b64 v[{r}:{r+1}], 0")
    T(f"""
v_lshrrev_b32 v31, 4, v1
v_and_b32 v32, 15, v1
v_lshrrev_b32 v216, 2, v32
v_lshl_add_u32 v216, v31, 4, v216
v_mul_u32_u24 v216, {WRS}, v216
v_lshl_add_u32 v216, v31, 5, v216
v_and_b32 v26, 3, v1
v_lshl_add_u32 v216, v26, 3, v216
v_lshlrev_b32 v217, 4, v31
v_bfe_u32 v26, v1, 4, 1
v_lshrrev_b32 v27, 5, v1
v_bfe_u32 v28, v1, 1, 1
v_lshl_add_u32 v218, v26, 1, v27
v_lshl_add_u32 v218, v218, 1, v28
v_lshlrev_b32 v218, 4, v218
v_lshl_add_u32 v219, v27, 1, v26
v_lshl_add_u32 v219, v219, 1, v28
v_lshlrev_b32 v219, 4, v219
v_add_u32 v219, {H16}, v219
s_mov_b32 s32, 0xaaaaaaaa
s_mov_b32 s33, 0xaaaaaaaa
s_mov_b32 s34, 0xcccccccc
s_mov_b32 s35, 0xcccccccc
v_mov_b32 v26, {U16}
v_mov_b32 v27, {P16}
v_cndmask_b32 v26, v26, v27, s[32:33]
v_add_u32 v218, v218, v26
v_mov_b32 v26, 0x44444444
v_mov_b32 v27, 0xeeeeeeee
v_cndmask_b32 v{vIDX}, v26, v27, s[34:35]
v_mul_u32_u24 v{vLANE}, {2*PS}, v31
v_lshl_add_u32 v{vLANE}, v32, 4, v{vLANE}
v_add_u32 v{vLANE}, {E16}, v{vLANE}
s_waitcnt lgkmcnt(0)
""")
    for k, (ra, rb) in enumerate([(220, 221), (222, 223), (vaS[0], vaS[1])]):
        T(f"s_and_b32 s57, s{80+k}, 0xffff\ns_lshr_b32 s58, s{80+k}, 16\nv_add_u32 v{ra}, s57, v{vLANE}\nv_add_u32 v{rb}, s58, v{vLANE}")
    T("s_mov_b32 m0, 0\ns_mov_b32 s60, s93")
    T(f"""
s_mov_b32 s58, -1
s_mov_b32 s59, s94
v_mov_b32 v{vD+1}, 0xff800000
v_mov_b64 v[{vD+2}:{vD+3}], 0
v_cndmask_b32 v{vD}, 0, v{vD+1}, s[58:59]
v_mov_b32 v{vD+1}, 0
v_mov_b64 v[{vL}:{vL+1}], 0
""")
    if DIAG == 3:
        stamp()
    T(f"s_waitcnt vmcnt({4 + OUTPF})")
    stamp()
    G = 48

    def gather(t):
        T(f"buffer_load_dwordx4 v[{G+4*t}:{G+4*t+3}], v{96+t}, s[28:31], 0 offen")
    for t in range(7):
        T(f"v_lshl_add_u32 v{96+t}, v{96+t}, 7, v114")
        if t < NFIRST:
            gather(t)
    T(f"s_waitcnt vmcnt({NFIRST})")
    T("v_dot2_f32_bf16 v236, v104, v108, 0")
    for i in range(4):
        T(f"v_lshlrev_b32 v{224+2*i}, 16, v{104+i}\nv_and_b32 v{225+2*i}, 0xffff0000, v{104+i}")
        if i < 3:
            T(f"v_dot2_f32_bf16 v236, v{105+i}, v{109+i}, v236")
    T("v_lshlrev_b32 v38, 16, v38")
    for i in range(4):
        T(f"v_cvt_pk_f16_f32 v{232+i}, v{224+2*i}, v{225+2*i}")
    T(f"""
v_add_f32_dpp v236, v236, v236 quad_perm:[1,0,3,2] row_mask:0xf bank_mask:0xf
ds_write_b128 v25, v[232:235] offset:{WOFF}
ds_write_b32 v24, v38
v_add_f32_dpp v236, v236, v236 quad_perm:[2,3,0,1] row_mask:0xf bank_mask:0xf
v_mul_f32 v38, s19, v38
s_nop 0
v_add_f32_dpp v236, v236, v236 row_half_mirror row_mask:0xf bank_mask:0xf
v_cvt_f16_f32 v38, v38
v_mul_f32 v236, {f32bits(HC):#x}, v236
ds_write_b16 v118, v38
v_cvt_f16_f32 v236, v236
ds_write_b16 v119, v236 offset:{U16}
s_waitcnt lgkmcnt(0)
s_barrier
""")
    stamp()
    rd = []
    for mt in range(4):
        for k in range(2):
            for hf in range(2):
                r = vW + (mt * 2 + k) * 4 + 2 * hf
                rd.append(f"ds_read_b64_tr_b16 v[{r}:{r+1}], v216 offset:{WOFF + (8*k+4*hf)*WRS + mt*32}")
    for mt in range(4):
        r = vBIAS + 4 * mt
        rd.append(f"ds_read_b128 v[{r}:{r+3}], v217 offset:{BS + 64*mt}")
    T(f"""
s_mov_b32 exec_lo, 0x000f000f
s_mov_b32 exec_hi, 0x000f000f
ds_read_b128 v[{vLINA}:{vLINA+3}], v218
s_mov_b32 exec_lo, 0x00050005
s_mov_b32 exec_hi, 0x00050005
ds_read_b128 v[{vEOP}:{vEOP+3}], v219
s_mov_b64 exec, -1
""")
    rest = list(range(NFIRST, 7))
    per = -(-len(rd) // max(1, len(rest)))
    for t in rest:
        gather(t)
        for x in rd[:per]:
            T(x)
        rd = rd[per:]
    for x in rd:
        T(x)

    def conv(t):
        g = G + 4 * t
        T(f"s_waitcnt vmcnt({6-t})")
        for i in range(4):
            T(f"v_lshlrev_b32 v{224+2*i}, 16, v{g+i}\nv_and_b32 v{225+2*i}, 0xffff0000, v{g+i}")
        for i in range(4):
            T(f"v_cvt_pk_f16_f32 v{g+i}, v{224+2*i}, v{225+2*i}")
        T(f"ds_write_b128 v30, v[{g}:{g+3}] offset:{t*4*FS}")
    conv(0)
    T("s_waitcnt lgkmcnt(15)")
    for tau in range(1, 4):
        for base in (vLINA, vEOP):
            for rho in range(4):
                T(f"v_mov_b32_dpp v{base+4*tau+rho}, v{base+rho} row_shr:{4*tau} row_mask:0xf bank_mask:0xf bound_ctrl:0")
    conv(1); conv(2); conv(3)
    if DIAG != 3:
        stamp()
    conv(4); conv(5)
    T("s_cmp_ge_u32 s53, 2\ns_cbranch_scc1 L_skip6")
    conv(6)
    T("L_skip6:")
    if PRIO:
        T("s_cmp_lt_u32 s52, 4\ns_cbranch_scc1 L_noprio\ns_setprio 1\nL_noprio:")
    T("s_waitcnt vmcnt(0) lgkmcnt(0)\ns_barrier")
    stamp(True)
    pre, sl, ep3, ep1 = main_parts()
    o += emit(pre)
    A(".p2align 6")
    A("L_loop:")
    o += emit(sl[0])
    o += emit(sl[1])
    A("L_slot2:")
    o += emit(sl[2])
    o += emit(sl[3])
    o += emit(ep3)
    T("L_tail:")
    stamp(True)
    SCR = WOFF
    T(f"""
v_lshrrev_b32 v12, 4, v0
v_mul_u32_u24 v12, 17, v12
v_and_b32 v13, 15, v0
v_add_lshl_u32 v12, v12, v13, 3
ds_write_b64 v12, v[{vL}:{vN}] offset:{SCR}
v_and_b32 v13, 31, v1
v_mul_u32_u24 v13, 17, v13
v_lshrrev_b32 v14, 5, v1
s_lshl_b32 s57, s52, 1
v_add_u32 v14, s57, v14
v_add_lshl_u32 v13, v13, v14, 3
v_lshlrev_b32 v15, 2, v14
v_mov_b32 v19, 0
s_lshl_b32 s57, s2, 4
v_add_u32 v14, s57, v14
v_lshlrev_b32 v14, 1, v14
v_mov_b32 v26, 0x1f800000
v_mov_b32 v27, 0x71800000
v_mov_b32 v25, 0x207
v_and_b32 v28, 31, v1
s_waitcnt lgkmcnt(0)
s_barrier
""")
    stamp()
    T(f"""
ds_read_b64 v[16:17], v13 offset:{SCR}
ds_read_b32 v18, v15 offset:{EOK}
ds_read_b64 v[20:21], v19 offset:{WOK}
v_cmp_eq_u32 s[58:59], 0, v28
s_waitcnt lgkmcnt(2)
""")
    for d in ["quad_perm:[1,0,3,2]", "quad_perm:[2,3,0,1]", "row_half_mirror", "row_mirror"]:
        T(f"v_add_f32_dpp v16, v16, v16 {d} row_mask:0xf bank_mask:0xf\nv_add_f32_dpp v17, v17, v17 {d} row_mask:0xf bank_mask:0xf\ns_nop 0")
    T(f"""
v_mov_b32 v22, v16
v_mov_b32 v23, v17
s_nop 0
v_permlane16_swap_b32 v16, v22
v_permlane16_swap_b32 v17, v23
s_mov_b64 exec, s[58:59]
v_add_f32 v16, v16, v22
v_add_f32 v17, v17, v23
v_rcp_f32 v22, v16
v_med3_f32 v26, v16, v26, v27
v_mul_f32 v17, v17, v22
v_cmp_neq_f32 vcc, v26, v16
v_cvt_pk_bf16_f32 v24, v17, v17
v_cmp_class_f32 s[46:47], v17, v25
buffer_store_short v24, v14, s[48:51], 0 offen
s_waitcnt lgkmcnt(0)
v_and_b32 v18, v18, v20
v_and_b32 v18, v18, v21
v_cmp_eq_u32 s[44:45], 0, v18
@DIAG@
s_or_b64 s[46:47], s[46:47], vcc
s_or_b64 s[44:45], s[44:45], s[46:47]
s_and_b64 s[44:45], s[44:45], exec
s_cbranch_scc1 L_slow
L_end:
s_endpgm
L_ep1:
""")
    o += emit(ep1)
    T("s_branch L_tail\nL_pf_end:")
    T("""
L_slow:
s_mov_b64 exec, -1
v_lshlrev_b32 v2, 1, v1
v_add_u32 v3, 4096, v2
""")
    for d in range(64):
        T(f"global_load_ushort v{128+d}, v{2 if d < 32 else 3}, s[8:9] offset:{(d % 32) * 128}")
    T(f"""
global_load_ushort v100, v2, s[10:11]
global_load_ushort v101, v2, s[12:13]
global_load_ushort v102, v2, s[14:15]
s_mul_i32 s36, s52, 6656
s_add_u32 s36, s36, {E16}
v_lshlrev_b32 v4, 2, v1
v_add_u32 v4, s36, v4
s_waitcnt vmcnt(0)
""")
    for d in range(64):
        T(f"v_lshlrev_b32 v{128+d}, 16, v{128+d}")
    T("""
v_lshlrev_b32 v100, 16, v100
v_lshlrev_b32 v101, 16, v101
v_lshlrev_b32 v102, 16, v102
s_mov_b32 s37, 0
L_slow_b:
s_cmp_eq_u32 s37, 0
s_cselect_b32 s38, s44, s45
s_cmp_eq_u32 s38, 0
s_cbranch_scc1 L_slow_next
s_lshl_b32 s39, s2, 4
s_lshl_b32 s40, s52, 1
s_add_u32 s39, s39, s40
s_add_u32 s39, s39, s37
s_mul_i32 s40, s39, 104
v_lshlrev_b32 v5, 2, v1
buffer_load_dword v6, v5, s[24:27], s40 offen
s_mov_b32 s41, 0
v_mov_b32 v7, v4
s_waitcnt vmcnt(0)
L_slow_rows:
v_readlane_b32 s42, v6, s41
s_nop 3
s_lshl_b32 s42, s42, 7
buffer_load_ushort v8, v2, s[28:31], s42 offen
s_waitcnt vmcnt(0)
v_lshlrev_b32 v8, 16, v8
ds_write_b32 v7, v8
v_add_u32 v7, 256, v7
s_add_u32 s41, s41, 1
s_cmp_lt_u32 s41, 26
s_cbranch_scc1 L_slow_rows
v_mov_b32 v110, 0xff800000
v_mov_b32 v111, 0
v_mov_b32 v112, 0
s_mov_b32 s41, 0
s_waitcnt lgkmcnt(0)
L_slow_i:
s_lshl_b32 s42, s41, 8
v_add_u32 v7, s42, v4
ds_read_b32 v103, v7
s_add_u32 s43, s41, 1
L_slow_j:
s_lshl_b32 s42, s43, 8
v_add_u32 v7, s42, v4
ds_read_b32 v104, v7
s_waitcnt lgkmcnt(0)
v_mul_f32 v105, v103, v104
v_cvt_pk_bf16_f32 v105, v105, v105
v_lshlrev_b32 v105, 16, v105
v_mov_b32 v106, v100
v_mul_f32 v107, v105, v102
""")
    for g in range(8):
        for k in range(8):
            T(f"v_readlane_b32 s{64+k}, v105, {8*g+k}")
        for k in range(8):
            T(f"v_fma_f32 v106, s{64+k}, v{128+8*g+k}, v106")
    T("v_max_f32 v106, 0, v106\nv_mul_f32 v106, v106, v101\ns_nop 1")
    for dd in ["quad_perm:[1,0,3,2]", "quad_perm:[2,3,0,1]", "row_half_mirror", "row_mirror"]:
        T(f"v_add_f32_dpp v106, v106, v106 {dd} row_mask:0xf bank_mask:0xf\nv_add_f32_dpp v107, v107, v107 {dd} row_mask:0xf bank_mask:0xf\ns_nop 0")
    for sw in ("v_permlane16_swap_b32", "v_permlane32_swap_b32"):
        T(f"""
v_mov_b32 v108, v106
v_mov_b32 v109, v107
s_nop 1
{sw} v106, v108
{sw} v107, v109
s_nop 1
v_add_f32 v106, v106, v108
v_add_f32 v107, v107, v109
""")
    T(f"""
v_mul_f32 v106, {f32bits(LOG2E):#x}, v106
v_max_f32 v108, v110, v106
v_sub_f32 v109, v110, v108
v_sub_f32 v106, v106, v108
v_exp_f32 v109, v109
v_exp_f32 v106, v106
v_mov_b32 v110, v108
s_nop 0
v_mul_f32 v111, v111, v109
v_mul_f32 v112, v112, v109
v_add_f32 v111, v111, v106
v_fma_f32 v112, v106, v107, v112
s_add_u32 s43, s43, 1
s_cmp_lt_u32 s43, 26
s_cbranch_scc1 L_slow_j
s_add_u32 s41, s41, 1
s_cmp_lt_u32 s41, 25
s_cbranch_scc1 L_slow_i
v_rcp_f32 v111, v111
s_lshl_b32 s39, s39, 1
v_mov_b32 v7, s39
v_mul_f32 v112, v112, v111
v_cvt_pk_bf16_f32 v112, v112, v112
s_waitcnt vmcnt(0)
s_mov_b64 exec, 1
buffer_store_short v112, v7, s[48:51], 0 offen
s_mov_b64 exec, -1
L_slow_next:
s_add_u32 s37, s37, 1
s_cmp_lt_u32 s37, 2
s_cbranch_scc1 L_slow_b
s_endpgm
""")
    if DIAG:
        ns = min(stamp_n[0], 9) - (0 if stamp_n[0] < 9 else 1)
        d = [f"s_memtime s[{62+2*ns}:{63+2*ns}]", "s_memrealtime s[96:97]", "s_load_dwordx2 s[40:41], s[0:1], 80", "s_waitcnt lgkmcnt(0)",
             "s_mov_b64 s[100:101], exec", "s_mov_b64 exec, 1", "s_lshl_b32 s42, s2, 3", "s_add_u32 s42, s42, s52", "s_lshl_b32 s42, s42, 6", "v_mov_b32 v2, s42",
             "v_mov_b32 v3, s98", "global_store_dword v2, v3, s[40:41]", "v_mov_b32 v3, s96", "global_store_dword v2, v3, s[40:41] offset:4"]
        for k in range(1, ns + 1):
            d += [f"s_sub_u32 s42, s{62+2*k}, s62", "v_mov_b32 v3, s42", f"global_store_dword v2, v3, s[40:41] offset:{4+4*k}"]
        d += ["s_getreg_b32 s42, hwreg(HW_REG_HW_ID)", "v_mov_b32 v3, s42", "global_store_dword v2, v3, s[40:41] offset:56"]
        for k in range(rt_n[0]):
            d += [f"s_sub_u32 s42, s{32+2*k}, s98", "v_mov_b32 v3, s42", f"global_store_dword v2, v3, s[40:41] offset:{44+4*k}"]
        d += ["s_mov_b64 exec, s[100:101]"]
        assert 62 + 2 * ns + 1 < 80
        txt = "\n".join("  " + x for x in d)
    else:
        txt = ""
    o[:] = [txt if l.strip() == "@DIAG@" else l for l in o]
    A(".p2align 6")
    A(".type L_tbl,@object")
    A("L_tbl:")
    for k in range(0, len(tbl), 16):
        A("  .long " + ", ".join(f"{x:#x}" for x in tbl[k:k + 16]))
    A('.section .rodata,"a"')
    A(".p2align 6")
    A(f".amdhsa_kernel {KNAME}")
    A("""  .amdhsa_next_free_vgpr 256
  .amdhsa_next_free_sgpr 102
  .amdhsa_accum_offset 256
  .amdhsa_group_segment_fixed_size 0
  .amdhsa_kernarg_size 88
  .amdhsa_user_sgpr_count 2
  .amdhsa_user_sgpr_kernarg_segment_ptr 1
  .amdhsa_system_sgpr_workgroup_id_x 1
.end_amdhsa_kernel""")
    return "\n".join(o) + "\n"


if __name__ == "__main__":
    for a in list(sys.argv):
        for key in ("prio", "nfirst", "outpf"):
            if a.startswith(f"--{key}="):
                globals()[key.upper()] = int(a.split("=")[1])
                sys.argv.remove(a)
    if "--diag" in sys.argv:
        DIAG = 1
        sys.argv.remove("--diag")
    if "--diag3" in sys.argv:
        DIAG = 3
        sys.argv.remove("--diag3")
    if "--diag2" in sys.argv:
        DIAG = 2
        sys.argv.remove("--diag2")
    out = sys.argv[1] if len(sys.argv) > 1 else "standalone__factorization_afm__recsys.s"
    open(out, "w").write(gen())
    print("wrote", out)
```

```python
import sys, struct
from asmkit import I, vr, auto_waits_paths, check_hazards, emit
import sched3

KNAME = "standalone__factorization_afm__recsys_kernel"

FS = 2176
PS = 272
CELL = 0
EOK = CELL
WOK = CELL + 64
POK = CELL + 68
HOK = CELL + 72
TRASH = CELL + 76
SUM = CELL + 128
BS = 512
U16 = 768
P16 = 896
H16 = 1024
T16 = 1152
T32 = 1280
WOFF = 2048
WRS = 192
E16 = WOFF + 64 * WRS + 128
LDS_TOTAL = E16 + 26 * FS

vW, vBIAS, vLINA, vEOP, vX, vACC = 128, 160, 176, 192, 208, 224
vBP = 112
vCEN = [64, 72, 80, 88]
vSTR = [96, 104]
vD, vIDX = 44, 43
vE, vS = 36, 37
vL, vN = 34, 35
vWt = 33
NIT = 10
vaS = [40, 41]
vLANE = 42

LOG2E = 1.4426950408889634
HC = 0.5 * LOG2E
DIAG = 0
PRIO = 2
NFIRST = 3
OUTPF = 0


def f32bits(x):
    return struct.unpack("<I", struct.pack("<f", x))[0]


def build_tables():
    W, half = sched3.schedule()
    sched3.check(W, half)
    data = []
    for (r0, r1), h in zip(W, half):
        pk = lambda a, b: (a * FS) | ((b * FS) << 16)
        ent = [pk(2 * r0[0], 2 * r1[0]), pk(2 * r0[0] + 1, 2 * r1[0] + 1)]
        for k in range(NIT + 1):
            kk = min(k, NIT - 1)
            ent.append(pk(r0[2][kk], r1[2][kk]))
        ent.append(NIT + 1)
        ent.append((0 if r0[1] else 0x0000ffff) | (0 if r1[1] else 0xffff0000))
        ent.append(1 if h else 0xffff)
        assert len(ent) == 16
        data += ent
    return data


def mfma(par, mt, k):
    acc = vACC + 16 * par + 4 * mt
    a = vW + (mt * 2 + k) * 4
    b = vBP + 8 * par + 4 * k
    c = (vBIAS + 4 * mt) if k == 0 else acc
    return I(f"v_mfma_f32_16x16x32_f16 {vr(acc,4)}, {vr(a,4)}, {vr(b,4)}, {vr(c,4)}", "mfma4",
             rd=list(range(a, a + 4)) + list(range(b, b + 4)), wr=range(acc, acc + 4), srcc=range(c, c + 4))


def smf(a, b):
    return I(f"v_smfmac_f32_16x16x64_f16 {vr(vD,4)}, {vr(a,4)}, {vr(b,8)}, v{vIDX}", "mfma4",
             rd=list(range(a, a + 4)) + list(range(b, b + 8)) + [vIDX], wr=range(vD, vD + 4), srcc=range(vD, vD + 4))


def prod(tau, i):
    d = vBP + 8 * (tau & 1) + i
    h = vCEN[tau] + i
    s = vSTR[tau & 1] + i
    return I(f"v_pk_mul_f16 v{d}, v{h}, v{s}", "valu", rd=[h, s], wr=[d])


def cvt(par, i):
    x = vACC + 16 * par + 2 * i
    return I(f"v_cvt_pk_f16_f32 v{vX+i}, |v{x}|, |v{x+1}|", "valu", rd=[x, x + 1], wr=[vX + i])


def ldc(dst, addr, c):
    return I(f"ds_read_b128 {vr(dst+4*c,4)}, v{addr} offset:{c*PS}", "dsr", rd=[addr], wr=range(dst + 4 * c, dst + 4 * c + 4))


def V(text, rd, wr, kind="valu"):
    return I(text, kind, rd=rd, wr=wr)


def S_(text):
    return I(text, "salu")


def fin_parts():
    return dict(
        e=V(f"v_add_f32 v{vE}, v{vD}, v{vD+2}", [vD, vD + 2], [vE]),
        s=V(f"v_add_f32 v{vS}, v{vD+1}, v{vD+3}", [vD + 1, vD + 3], [vS]),
        z0=V(f"v_mov_b64 {vr(vD,2)}, 0", [], [vD, vD + 1]),
        z1=V(f"v_mov_b64 {vr(vD+2,2)}, 0", [], [vD + 2, vD + 3]),
        x=V(f"v_exp_f32 v{vWt}, v{vE}", [vE], [vWt], "trans"),
        l=V(f"v_add_f32 v{vL}, v{vL}, v{vWt}", [vL, vWt], [vL]),
        n=V(f"v_fma_f32 v{vN}, v{vWt}, v{vS}, v{vN}", [vWt, vS, vN], [vN]))


def slot(tau):
    par = tau & 1
    prev = (tau + 3) % 4
    nxt = (tau + 1) % 4
    M = lambda mt, k: mfma(par, mt, k)
    C = [cvt(1 - par, i) for i in range(8)]
    P = [prod(nxt, i) for i in range(8)]
    P[0].rd |= set(range(vSTR[nxt & 1], vSTR[nxt & 1] + 8))
    SL = smf(vLINA + 4 * prev, vBP + 8 * (1 - par))
    SE = smf(vEOP + 4 * prev, vX)
    F = fin_parts()
    t0 = lambda x: x if tau == 0 else []
    t1 = lambda x: x if tau == 1 else []
    mov = [I("s_movrels_b32 s57, s83", "salu", rd=[1100], wr=[1057]), I("s_add_u32 m0, m0, 1", "salu", rd=[1100], wr=[1100, 1200])]
    spl = [I("s_and_b32 s58, s57, 0xffff", "salu", rd=[1057], wr=[1058, 1200]), I("s_lshr_b32 s59, s57, 16", "salu", rd=[1057], wr=[1059, 1200])]
    adr = [V(f"v_add_u32 v{vaS[0]}, s58, v{vLANE}", [vLANE, 1058], [vaS[0]]), V(f"v_add_u32 v{vaS[1]}, s59, v{vLANE}", [vLANE, 1059], [vaS[1]])]
    lds = []
    if tau == 1:
        lds = [ldc(vSTR[0], vaS[0], 0), ldc(vSTR[0], vaS[0], 1)]
    if tau == 2:
        lds = [ldc(vSTR[1], vaS[1], 0), ldc(vSTR[1], vaS[1], 1)]
    L = [M(0, 0), C[0], C[1]] + t1([F["x"]]) + [SL] + t0(mov) + t1([F["l"]]) + [M(0, 1), C[2], C[3]]
    L += [M(1, 0), C[4], C[5]] + t0(spl) + [M(1, 1), C[6], C[7]]
    L += [M(2, 0), P[0], P[1], SE] + t0(adr) + t1([F["n"]]) + [M(2, 1), P[2], P[3]]
    L += [M(3, 0), P[4], P[5]] + t1([S_("s_cmp_eq_u32 s60, s95")]) + [M(3, 1), P[6], P[7]]
    L += t0([F["e"], F["s"], F["z0"], F["z1"]]) + lds
    if tau == 1:
        L += [S_("s_cbranch_scc1 L_ep1")]
    return L


def flags():
    G = 48
    L = [V(f"v_and_b32 v238, 0x7fff7fff, v{G}", [G], [238]), V("v_and_b32 v237, 0x7fff7fff, v232", [232], [237]),
         V("v_and_b32 v38, 0x7fff, v38", [38], [38]),
         V("v_lshrrev_b32 v239, 3, v1", [1], [239]),
         V("v_max_u16_sdwa v238, v238, v238 dst_sel:DWORD dst_unused:UNUSED_PAD src0_sel:WORD_0 src1_sel:WORD_1", [238], [238]),
         V("v_max_u16_sdwa v237, v237, v237 dst_sel:DWORD dst_unused:UNUSED_PAD src0_sel:WORD_0 src1_sel:WORD_1", [237], [237]),
         S_("s_lshl_b32 s57, s54, 5"),
         V("v_lshl_add_u32 v239, v239, 2, s57", [239], [239]),
         V("v_mov_b32 v22, 1", [], [22]), V(f"v_mov_b32 v23, {TRASH}", [], [23]),
         V("v_cmp_le_u32 vcc, 0x2800, v238", [238], []), V(f"v_mov_b32 v24, {WOK}", [], [24]), V("v_mov_b32 v25, s44", [], [25]),
         V("v_cndmask_b32 v239, v23, v239, vcc", [23, 239], [239]),
         V("v_cmp_le_u32 vcc, 0x1c00, v237", [237], []), S_("s_nop 1"),
         V("v_cndmask_b32 v24, v23, v24, vcc", [23, 24], [24]),
         V("v_cmp_le_u32 vcc, 0x2400, v38", [38], []),
         I(f"ds_write_b32 v239, v22 offset:{EOK}", "dsw", rd=[239, 22]), I("ds_write_b32 v24, v22", "dsw", rd=[24, 22]),
         V("v_cndmask_b32 v25, v23, v25, vcc", [23, 25], [25]),
         I("ds_write_b32 v25, v22", "dsw", rd=[25, 22])]
    return L


def tail_prep():
    return [V("v_lshrrev_b32 v12, 4, v0", [0], [12]), V("v_mul_u32_u24 v12, 17, v12", [12], [12]), V("v_and_b32 v13, 15, v0", [0], [13]),
            V("v_add_lshl_u32 v12, v12, v13, 3", [12, 13], [12]),
            V("v_and_b32 v28, 31, v1", [1], [28]), V("v_mul_u32_u24 v13, 17, v28", [28], [13]), V("v_lshrrev_b32 v14, 5, v1", [1], [14]),
            S_("s_lshl_b32 s57, s52, 1"), V("v_add_u32 v14, s57, v14", [14], [14]),
            V("v_add_lshl_u32 v13, v13, v14, 3", [13, 14], [13]), V("v_lshlrev_b32 v15, 2, v14", [14], [15]),
            S_("s_lshl_b32 s57, s2, 4"), V("v_add_u32 v14, s57, v14", [14], [14]), V("v_lshlrev_b32 v14, 1, v14", [14], [14]),
            V("v_mov_b32 v19, 0", [], [19]), V("v_mov_b32 v26, 0x1f800000", [], [26]), V("v_mov_b32 v27, 0x71800000", [], [27]),
            V("v_mov_b32 v25, 0x207", [], [25]), V("v_cmp_eq_u32 s[58:59], 0, v28", [28], [])]


def epilogue(tau, half):
    F = fin_parts()
    C = [cvt(1, i) for i in range(8)]
    tp = tail_prep()
    L = [smf(vLINA + 4 * tau, vBP + 8)] + tp[0:5] + C + tp[5:7] + [smf(vEOP + 4 * tau, vX)] + tp[7:15] + [F["e"], F["s"], F["x"]]
    if half:
        L += [S_("s_mov_b32 exec_hi, 0")]
    else:
        L += [tp[15]]
    L += [F["l"], F["n"]]
    if half:
        L += [S_("s_mov_b32 exec_hi, -1"), tp[15]]
    L += tp[16:]
    return L


ORDER_FILE = None


def apply_order(sl, order):
    if isinstance(order, str):
        import json
        order = json.load(open(order))
    return [[s[i] for i in p] for s, p in zip(sl, order)]


def main_parts():
    pre = []
    for reg, ad in ((vCEN[0], 220), (vCEN[2], 222), (vCEN[1], 221), (vCEN[3], 223)):
        pre += [ldc(reg, ad, 0), ldc(reg, ad, 1)]
    pre += [ldc(vSTR[0], vaS[0], 0), ldc(vSTR[0], vaS[0], 1)]
    for i in range(8):
        pre.append(V(f"v_pk_mul_f16 v{vBP+i}, v{vCEN[2]+i}, v{vCEN[0]+i}", [vCEN[2] + i, vCEN[0] + i], [vBP + i]))
    for i in range(0, 8, 2):
        pre.append(V(f"v_mov_b64 {vr(vSTR[1]+i,2)}, {vr(vCEN[1]+i,2)}", [vCEN[1] + i, vCEN[1] + i + 1], [vSTR[1] + i, vSTR[1] + i + 1]))
    br0 = S_("s_branch L_slot2")
    br0.fixed = 2
    pre.append(br0)
    sl = [slot(t) for t in range(4)]
    if ORDER_FILE:
        sl = apply_order(sl, ORDER_FILE)
    ctl = [S_("s_sub_u32 s60, s60, 1"), S_("s_cmp_lg_u32 s60, 0")]
    if PRIO:
        ctl = [S_("s_sub_u32 s60, s60, 1"), S_(f"s_cmp_eq_u32 s60, {PRIO}"), S_("s_cbranch_scc1 L_prio"), S_("L_keep:"), S_("s_cmp_lg_u32 s60, 0")]
    sl[3] = sl[3][:-4] + ctl + sl[3][-4:] + [S_("s_cbranch_scc1 L_loop")]
    ep3 = epilogue(3, False)
    ep1 = epilogue(1, True)
    body = sl[0] + sl[1] + sl[2] + sl[3]
    paths = []
    for trips in range(0, 3):
        head = pre + sl[2] + sl[3] + body * trips
        paths += [head + ep3, head + sl[0] + sl[1] + ep1]
    auto_waits_paths(paths)
    errs = []
    for p in paths:
        errs += check_hazards(p, "p")
    errs = sorted(set(errs))
    if errs:
        print("\n".join(errs), file=sys.stderr)
        raise SystemExit("hazards")
    return pre, sl, ep3, ep1


def gen():
    tbl = build_tables()
    o = []
    A = o.append
    with open("standalone__factorization_afm__recsys.s.ref") as f:
        for line in f:
            if line.startswith("; @launch"):
                break
            if line.startswith("; Override") or line.startswith("; grid="):
                continue
            A(line.rstrip())
    A(f"; @launch grid=(256,1,1) block=(512,1,1) lds={LDS_TOTAL}")
    A('.amdgcn_target "amdgcn-amd-amdhsa--gfx950"')
    A(".text")
    A(f".globl {KNAME}")
    A(".p2align 8")
    A(f".type {KNAME},@function")
    A(f"{KNAME}:")

    def T(s):
        for l in s.strip("\n").split("\n"):
            l = l.strip()
            if l:
                A(l if l.endswith(":") else "  " + l)

    stamp_n = [0]
    rt_n = [0]

    def stamp(rt=False):
        if DIAG:
            k = stamp_n[0]
            stamp_n[0] += 1
            T(f"s_memtime s[{62+2*k}:{63+2*k}]") if k < 9 else None
            if rt and DIAG >= 2:
                T(f"s_memrealtime s[{32+2*rt_n[0]}:{33+2*rt_n[0]}]")
                rt_n[0] += 1

    if DIAG:
        T("s_memrealtime s[98:99]")
    stamp()
    NPF = "(L_pf_end-L_pc+127)/128"
    T(f"""
s_cmp_ge_u32 s2, 256
s_cbranch_scc1 L_end
s_load_dwordx2 s[24:25], s[0:1], 0
s_load_dwordx2 s[28:29], s[0:1], 8
s_load_dwordx8 s[8:15], s[0:1], 32
s_load_dwordx2 s[48:49], s[0:1], 64
s_getpc_b64 s[22:23]
L_pc:
v_lshrrev_b32 v26, 6, v0
v_and_b32 v1, 63, v0
v_and_b32 v27, 15, v0
v_readfirstlane_b32 s52, v26
v_lshl_add_u32 v27, v26, 4, v27
v_lshlrev_b32 v27, 6, v27
v_min_u32 v27, L_pf_end-L_pc-4, v27
s_lshl_b32 s61, s52, 6
s_add_u32 s61, s61, L_tbl-L_pc
global_load_dword v103, v27, s[22:23]
s_lshr_b32 s53, s52, 1
s_and_b32 s54, s52, 1
s_mul_i32 s55, s53, 28
s_cmp_eq_u32 s53, 3
s_cselect_b32 s56, 4, 0
s_sub_u32 s55, s55, s56
s_mul_i32 s56, s2, 1664
s_add_u32 s55, s55, s56
s_mul_i32 s56, s54, 832
s_add_u32 s56, s55, s56
v_lshrrev_b32 v22, 3, v1
v_mul_u32_u24 v113, 104, v22
v_and_b32 v23, 7, v1
v_lshlrev_b32 v114, 4, v23
v_lshlrev_b32 v117, 7, v23
s_mov_b32 s26, 425984
s_mov_b32 s27, 0x20000
s_mov_b32 s30, 128000
s_mov_b32 s31, 0x20000
s_mov_b32 s50, 8192
s_mov_b32 s51, 0x20000
s_lshr_b32 s57, s2, 3
s_and_b32 s57, s57, 15
s_lshl_b32 s57, s57, 3
s_add_u32 s57, s57, s52
s_lshl_b32 s57, s57, 10
s_waitcnt lgkmcnt(0)
buffer_load_dwordx4 v[96:99], v113, s[24:27], s56 offen
buffer_load_dwordx3 v[100:102], v113, s[24:27], s56 offen offset:16
buffer_load_dword v103, v117, s[28:31], s57 offen
""")
    if OUTPF:
        T("s_lshl_b32 s57, s2, 5\nv_mov_b32 v29, s57\nbuffer_load_dword v103, v29, s[48:51], 0 offen")
    T("""
s_load_dwordx16 s[80:95], s[22:23], s61
""")
    stamp()
    T(f"""
s_and_b32 s18, s52, 3
s_mov_b32 s20, {T16}
s_mov_b32 s44, {TRASH}
s_mov_b32 s21, {T32}
s_cmp_eq_u32 s18, 1
s_cselect_b32 s16, s12, s10
s_cselect_b32 s17, s13, s11
s_cselect_b32 s19, {f32bits(HC):#x}, 1.0
s_cselect_b32 s20, {H16}, s20
s_cselect_b32 s44, {HOK}, s44
s_cselect_b32 s45, 1, 0
s_cmp_eq_u32 s18, 2
s_cselect_b32 s16, s14, s16
s_cselect_b32 s17, s15, s17
s_cselect_b32 s20, {P16}, s20
s_cselect_b32 s44, {POK}, s44
s_cmp_eq_u32 s18, 0
s_cselect_b32 s21, {BS}, s21
s_cmp_eq_u32 s18, 3
s_cselect_b32 s21, {BS}, s21
v_lshlrev_b32 v115, 4, v0
v_lshlrev_b32 v116, 1, v1
global_load_dwordx4 v[104:107], v115, s[8:9]
global_load_dwordx4 v[108:111], v114, s[12:13]
global_load_ushort v38, v116, s[16:17]
""")

    T(f"""
v_lshrrev_b32 v25, 3, v0
v_add_u32 v118, s20, v116
v_lshlrev_b32 v119, 1, v25
s_mul_i32 s57, s53, {FS}
s_lshl_b32 s58, s54, 7
s_add_u32 s57, s57, s58
s_add_u32 s57, s57, {E16}
v_mul_u32_u24 v30, {PS}, v23
v_lshl_add_u32 v30, v22, 4, v30
v_add_u32 v30, s57, v30
v_lshrrev_b32 v26, 4, v25
v_mul_u32_u24 v25, {WRS}, v25
v_lshl_add_u32 v25, v26, 5, v25
v_add_u32 v25, v25, v114
v_lshlrev_b32 v24, 2, v1
v_mov_b32 v26, 0
ds_write_b32 v24, v26 offset:{CELL}
v_add_u32 v24, s21, v24
""")
    T(f"""
v_lshrrev_b32 v31, 4, v1
v_and_b32 v32, 15, v1
v_lshrrev_b32 v216, 2, v32
v_lshl_add_u32 v216, v31, 4, v216
v_mul_u32_u24 v216, {WRS}, v216
v_lshl_add_u32 v216, v31, 5, v216
v_and_b32 v26, 3, v1
v_lshl_add_u32 v216, v26, 3, v216
v_and_b32 v217, 0x30, v1
v_bfe_u32 v26, v1, 4, 1
v_lshrrev_b32 v27, 5, v1
v_and_b32 v28, 2, v1
v_lshlrev_b32 v28, 1, v28
v_lshl_add_u32 v218, v26, 6, v28
v_lshl_add_u32 v218, v27, 4, v218
v_lshl_add_u32 v219, v27, 6, v28
v_lshl_add_u32 v219, v26, 4, v219
v_add_u32 v219, {H16}, v219
v_and_b32 v26, 1, v1
v_mul_u32_u24 v26, {P16 - U16}, v26
v_add_u32 v218, v218, v26
v_add_u32 v218, {U16}, v218
""")
    T(f"""
v_mov_b64 v[{vLINA}:{vLINA+1}], 0
v_mov_b64 v[{vLINA+2}:{vLINA+3}], 0
v_mov_b64 v[{vEOP}:{vEOP+1}], 0
v_mov_b64 v[{vEOP+2}:{vEOP+3}], 0
""")
    for k in range(8):
        T(f"v_mov_b64 v[{vACC+16+2*k}:{vACC+17+2*k}], 0")
    for k in range(4):
        T(f"v_mov_b64 v[{vBP+8+2*k}:{vBP+9+2*k}], 0")
    T(f"""
s_mov_b32 s32, 0xcccccccc
s_mov_b32 s33, 0xcccccccc
v_mov_b32 v26, 0x44444444
v_mov_b32 v27, 0xeeeeeeee
v_cndmask_b32 v{vIDX}, v26, v27, s[32:33]
v_mul_u32_u24 v{vLANE}, {2*PS}, v31
v_lshl_add_u32 v{vLANE}, v32, 4, v{vLANE}
v_add_u32 v{vLANE}, {E16}, v{vLANE}
""")
    T("s_waitcnt lgkmcnt(0)")
    for k, (ra, rb) in enumerate([(220, 221), (222, 223), (vaS[0], vaS[1])]):
        T(f"s_and_b32 s57, s{80+k}, 0xffff\ns_lshr_b32 s58, s{80+k}, 16\nv_add_u32 v{ra}, s57, v{vLANE}\nv_add_u32 v{rb}, s58, v{vLANE}")
    T(f"""
s_mov_b32 m0, 0
s_mov_b32 s60, s93
s_mov_b32 s58, -1
s_mov_b32 s59, s94
v_mov_b32 v{vD+1}, 0xff800000
v_mov_b64 v[{vD+2}:{vD+3}], 0
v_cndmask_b32 v{vD}, 0, v{vD+1}, s[58:59]
v_mov_b32 v{vD+1}, 0
v_mov_b64 v[{vL}:{vL+1}], 0
""")
    if DIAG == 3:
        stamp()
    T(f"s_waitcnt vmcnt({4 + OUTPF})")
    stamp()
    G = 48

    def gather(t):
        T(f"buffer_load_dwordx4 v[{G+4*t}:{G+4*t+3}], v{96+t}, s[28:31], 0 offen")
    for t in range(7):
        T(f"v_lshl_add_u32 v{96+t}, v{96+t}, 7, v114")
        if t < NFIRST:
            gather(t)
    T(f"s_waitcnt vmcnt({NFIRST})")
    T("v_dot2_f32_bf16 v236, v104, v108, 0")
    for i in range(4):
        T(f"v_lshlrev_b32 v{224+2*i}, 16, v{104+i}\nv_and_b32 v{225+2*i}, 0xffff0000, v{104+i}")
        if i < 3:
            T(f"v_dot2_f32_bf16 v236, v{105+i}, v{109+i}, v236")
    T("v_lshlrev_b32 v38, 16, v38")
    for i in range(4):
        T(f"v_cvt_pk_f16_f32 v{232+i}, v{224+2*i}, v{225+2*i}")
    T(f"""
v_add_f32_dpp v236, v236, v236 quad_perm:[1,0,3,2] row_mask:0xf bank_mask:0xf
ds_write_b128 v25, v[232:235] offset:{WOFF}
ds_write_b32 v24, v38
v_add_f32_dpp v236, v236, v236 quad_perm:[2,3,0,1] row_mask:0xf bank_mask:0xf
v_mul_f32 v38, s19, v38
s_nop 0
v_add_f32_dpp v236, v236, v236 row_half_mirror row_mask:0xf bank_mask:0xf
v_cvt_f16_f32 v38, v38
v_mul_f32 v236, {f32bits(HC):#x}, v236
ds_write_b16 v118, v38
v_cvt_f16_f32 v236, v236
ds_write_b16 v119, v236 offset:{U16}
s_waitcnt lgkmcnt(0)
s_barrier
""")
    stamp()
    rd = []
    for mt in range(4):
        for k in range(2):
            for hf in range(2):
                r = vW + (mt * 2 + k) * 4 + 2 * hf
                rd.append(f"ds_read_b64_tr_b16 v[{r}:{r+1}], v216 offset:{WOFF + (8*k+4*hf)*WRS + mt*32}")
    for mt in range(4):
        r = vBIAS + 4 * mt
        rd.append(f"ds_read_b128 v[{r}:{r+3}], v217 offset:{BS + 64*mt}")
    T(f"""
s_mov_b32 exec_lo, 0x000f000f
s_mov_b32 exec_hi, 0x000f000f
ds_read2_b32 v[{vLINA}:{vLINA+1}], v218 offset0:0 offset1:2
ds_read2_b32 v[{vLINA+2}:{vLINA+3}], v218 offset0:8 offset1:10
s_mov_b32 exec_lo, 0x00050005
s_mov_b32 exec_hi, 0x00050005
ds_read2_b32 v[{vEOP}:{vEOP+1}], v219 offset0:0 offset1:8
ds_read2_b32 v[{vEOP+2}:{vEOP+3}], v219 offset0:2 offset1:10
s_mov_b64 exec, -1
""")
    rest = list(range(NFIRST, 7))
    per = -(-len(rd) // max(1, len(rest)))
    for t in rest:
        gather(t)
        for x in rd[:per]:
            T(x)
        rd = rd[per:]
    for x in rd:
        T(x)

    def conv(t):
        g = G + 4 * t
        T(f"s_waitcnt vmcnt({6-t})")
        for i in range(4):
            T(f"v_lshlrev_b32 v{224+2*i}, 16, v{g+i}\nv_and_b32 v{225+2*i}, 0xffff0000, v{g+i}")
        for i in range(4):
            T(f"v_cvt_pk_f16_f32 v{g+i}, v{224+2*i}, v{225+2*i}")
        T(f"ds_write_b128 v30, v[{g}:{g+3}] offset:{t*4*FS}")
    conv(0)
    T("s_waitcnt lgkmcnt(15)")
    for tau in range(1, 4):
        for base in (vLINA, vEOP):
            for rho in range(4):
                T(f"v_mov_b32_dpp v{base+4*tau+rho}, v{base+rho} row_shr:{4*tau} row_mask:0xf bank_mask:0xf bound_ctrl:0")
    conv(1); conv(2); conv(3)
    if DIAG != 3:
        stamp()
    conv(4); conv(5)
    T("s_cmp_ge_u32 s53, 2\ns_cbranch_scc1 L_skip6")
    conv(6)
    o.extend(emit(flags()))
    T("L_skip6:")
    if PRIO:
        T("s_cmp_lt_u32 s52, 4\ns_cbranch_scc1 L_noprio\ns_setprio 1\nL_noprio:")
    T("s_waitcnt vmcnt(0) lgkmcnt(0)\ns_barrier")
    stamp(True)
    pre, sl, ep3, ep1 = main_parts()
    o += emit(pre)
    A(".p2align 6")
    A("L_loop:")
    o += emit(sl[0])
    o += emit(sl[1])
    A("L_slot2:")
    o += emit(sl[2])
    o += emit(sl[3])
    o += emit(ep3)
    T("L_tail:")
    stamp(True)
    SCR = WOFF
    T(f"""
ds_write_b64 v12, v[{vL}:{vN}] offset:{SCR}
s_waitcnt lgkmcnt(0)
s_barrier
""")
    stamp()
    T(f"""
ds_read_b64 v[16:17], v13 offset:{SCR}
ds_read_b32 v18, v15 offset:{EOK}
ds_read_b96 v[20:22], v19 offset:{WOK}
s_waitcnt lgkmcnt(2)
""")
    for d in ["quad_perm:[1,0,3,2]", "quad_perm:[2,3,0,1]", "row_half_mirror", "row_mirror"]:
        T(f"v_add_f32_dpp v16, v16, v16 {d} row_mask:0xf bank_mask:0xf\nv_add_f32_dpp v17, v17, v17 {d} row_mask:0xf bank_mask:0xf\ns_nop 0")
    T(f"""
v_mov_b32 v30, v16
v_mov_b32 v31, v17
s_nop 0
v_permlane16_swap_b32 v16, v30
v_permlane16_swap_b32 v17, v31
s_mov_b64 exec, s[58:59]
v_add_f32 v16, v16, v30
v_add_f32 v17, v17, v31
v_rcp_f32 v30, v16
v_med3_f32 v26, v16, v26, v27
v_mul_f32 v17, v17, v30
v_cmp_neq_f32 vcc, v26, v16
v_cvt_pk_bf16_f32 v24, v17, v17
v_cmp_class_f32 s[46:47], v17, v25
buffer_store_short v24, v14, s[48:51], 0 offen
s_waitcnt lgkmcnt(0)
v_and_b32 v18, v18, v20
v_and_b32 v21, v21, v22
v_and_b32 v18, v18, v21
v_cmp_eq_u32 s[44:45], 0, v18
@DIAG@
s_or_b64 s[46:47], s[46:47], vcc
s_or_b64 s[44:45], s[44:45], s[46:47]
s_and_b64 s[44:45], s[44:45], exec
s_cbranch_scc1 L_slow
L_end:
s_endpgm
L_ep1:
""")
    o += emit(ep1)
    T("s_branch L_tail")
    if PRIO:
        T("L_prio:\ns_setprio 0\ns_branch L_keep")
    T("L_pf_end:")
    T("""
L_slow:
s_mov_b64 exec, -1
v_lshlrev_b32 v2, 1, v1
v_add_u32 v3, 4096, v2
""")
    for d in range(64):
        T(f"global_load_ushort v{128+d}, v{2 if d < 32 else 3}, s[8:9] offset:{(d % 32) * 128}")
    T(f"""
global_load_ushort v100, v2, s[10:11]
global_load_ushort v101, v2, s[12:13]
global_load_ushort v102, v2, s[14:15]
s_mul_i32 s36, s52, 6656
s_add_u32 s36, s36, {E16}
v_lshlrev_b32 v4, 2, v1
v_add_u32 v4, s36, v4
s_waitcnt vmcnt(0)
""")
    for d in range(64):
        T(f"v_lshlrev_b32 v{128+d}, 16, v{128+d}")
    T("""
v_lshlrev_b32 v100, 16, v100
v_lshlrev_b32 v101, 16, v101
v_lshlrev_b32 v102, 16, v102
s_mov_b32 s37, 0
L_slow_b:
s_cmp_eq_u32 s37, 0
s_cselect_b32 s38, s44, s45
s_cmp_eq_u32 s38, 0
s_cbranch_scc1 L_slow_next
s_lshl_b32 s39, s2, 4
s_lshl_b32 s40, s52, 1
s_add_u32 s39, s39, s40
s_add_u32 s39, s39, s37
s_mul_i32 s40, s39, 104
v_lshlrev_b32 v5, 2, v1
buffer_load_dword v6, v5, s[24:27], s40 offen
s_mov_b32 s41, 0
v_mov_b32 v7, v4
s_waitcnt vmcnt(0)
L_slow_rows:
v_readlane_b32 s42, v6, s41
s_nop 3
s_lshl_b32 s42, s42, 7
buffer_load_ushort v8, v2, s[28:31], s42 offen
s_waitcnt vmcnt(0)
v_lshlrev_b32 v8, 16, v8
ds_write_b32 v7, v8
v_add_u32 v7, 256, v7
s_add_u32 s41, s41, 1
s_cmp_lt_u32 s41, 26
s_cbranch_scc1 L_slow_rows
v_mov_b32 v110, 0xff800000
v_mov_b32 v111, 0
v_mov_b32 v112, 0
s_mov_b32 s41, 0
s_waitcnt lgkmcnt(0)
L_slow_i:
s_lshl_b32 s42, s41, 8
v_add_u32 v7, s42, v4
ds_read_b32 v103, v7
s_add_u32 s43, s41, 1
L_slow_j:
s_lshl_b32 s42, s43, 8
v_add_u32 v7, s42, v4
ds_read_b32 v104, v7
s_waitcnt lgkmcnt(0)
v_mul_f32 v105, v103, v104
v_cvt_pk_bf16_f32 v105, v105, v105
v_lshlrev_b32 v105, 16, v105
v_mov_b32 v106, v100
v_mul_f32 v107, v105, v102
""")
    for g in range(8):
        for k in range(8):
            T(f"v_readlane_b32 s{64+k}, v105, {8*g+k}")
        for k in range(8):
            T(f"v_fma_f32 v106, s{64+k}, v{128+8*g+k}, v106")
    T("v_max_f32 v106, 0, v106\nv_mul_f32 v106, v106, v101\ns_nop 1")
    for dd in ["quad_perm:[1,0,3,2]", "quad_perm:[2,3,0,1]", "row_half_mirror", "row_mirror"]:
        T(f"v_add_f32_dpp v106, v106, v106 {dd} row_mask:0xf bank_mask:0xf\nv_add_f32_dpp v107, v107, v107 {dd} row_mask:0xf bank_mask:0xf\ns_nop 0")
    for sw in ("v_permlane16_swap_b32", "v_permlane32_swap_b32"):
        T(f"""
v_mov_b32 v108, v106
v_mov_b32 v109, v107
s_nop 1
{sw} v106, v108
{sw} v107, v109
s_nop 1
v_add_f32 v106, v106, v108
v_add_f32 v107, v107, v109
""")
    T(f"""
v_mul_f32 v106, {f32bits(LOG2E):#x}, v106
v_max_f32 v108, v110, v106
v_sub_f32 v109, v110, v108
v_sub_f32 v106, v106, v108
v_exp_f32 v109, v109
v_exp_f32 v106, v106
v_mov_b32 v110, v108
s_nop 0
v_mul_f32 v111, v111, v109
v_mul_f32 v112, v112, v109
v_add_f32 v111, v111, v106
v_fma_f32 v112, v106, v107, v112
s_add_u32 s43, s43, 1
s_cmp_lt_u32 s43, 26
s_cbranch_scc1 L_slow_j
s_add_u32 s41, s41, 1
s_cmp_lt_u32 s41, 25
s_cbranch_scc1 L_slow_i
v_rcp_f32 v111, v111
s_lshl_b32 s39, s39, 1
v_mov_b32 v7, s39
v_mul_f32 v112, v112, v111
v_cvt_pk_bf16_f32 v112, v112, v112
s_waitcnt vmcnt(0)
s_mov_b64 exec, 1
buffer_store_short v112, v7, s[48:51], 0 offen
s_mov_b64 exec, -1
L_slow_next:
s_add_u32 s37, s37, 1
s_cmp_lt_u32 s37, 2
s_cbranch_scc1 L_slow_b
s_endpgm
""")
    if DIAG:
        ns = min(stamp_n[0], 9) - (0 if stamp_n[0] < 9 else 1)
        d = [f"s_memtime s[{62+2*ns}:{63+2*ns}]", "s_memrealtime s[96:97]", "s_load_dwordx2 s[40:41], s[0:1], 80", "s_waitcnt lgkmcnt(0)",
             "s_mov_b64 s[100:101], exec", "s_mov_b64 exec, 1", "s_lshl_b32 s42, s2, 3", "s_add_u32 s42, s42, s52", "s_lshl_b32 s42, s42, 6", "v_mov_b32 v2, s42",
             "v_mov_b32 v3, s98", "global_store_dword v2, v3, s[40:41]", "v_mov_b32 v3, s96", "global_store_dword v2, v3, s[40:41] offset:4"]
        for k in range(1, ns + 1):
            d += [f"s_sub_u32 s42, s{62+2*k}, s62", "v_mov_b32 v3, s42", f"global_store_dword v2, v3, s[40:41] offset:{4+4*k}"]
        d += ["s_getreg_b32 s42, hwreg(HW_REG_HW_ID)", "v_mov_b32 v3, s42", "global_store_dword v2, v3, s[40:41] offset:56"]
        for k in range(rt_n[0]):
            d += [f"s_sub_u32 s42, s{32+2*k}, s98", "v_mov_b32 v3, s42", f"global_store_dword v2, v3, s[40:41] offset:{44+4*k}"]
        d += ["s_mov_b64 exec, s[100:101]"]
        assert 62 + 2 * ns + 1 < 80
        txt = "\n".join("  " + x for x in d)
    else:
        txt = ""
    o[:] = [txt if l.strip() == "@DIAG@" else l for l in o]
    A(".p2align 6")
    A(".type L_tbl,@object")
    A("L_tbl:")
    for k in range(0, len(tbl), 16):
        A("  .long " + ", ".join(f"{x:#x}" for x in tbl[k:k + 16]))
    A('.section .rodata,"a"')
    A(".p2align 6")
    A(f".amdhsa_kernel {KNAME}")
    A("""  .amdhsa_next_free_vgpr 256
  .amdhsa_next_free_sgpr 102
  .amdhsa_accum_offset 256
  .amdhsa_group_segment_fixed_size 0
  .amdhsa_kernarg_size 88
  .amdhsa_user_sgpr_count 2
  .amdhsa_user_sgpr_kernarg_segment_ptr 1
  .amdhsa_system_sgpr_workgroup_id_x 1
.end_amdhsa_kernel""")
    return "\n".join(o) + "\n"


if __name__ == "__main__":
    for a in list(sys.argv):
        if a.startswith("--order_file="):
            ORDER_FILE = a.split("=")[1]
            sys.argv.remove(a)
    for a in list(sys.argv):
        for key in ("prio", "nfirst", "outpf"):
            if a.startswith(f"--{key}="):
                globals()[key.upper()] = int(a.split("=")[1])
                sys.argv.remove(a)
    if "--diag" in sys.argv:
        DIAG = 1
        sys.argv.remove("--diag")
    if "--diag3" in sys.argv:
        DIAG = 3
        sys.argv.remove("--diag3")
    if "--diag2" in sys.argv:
        DIAG = 2
        sys.argv.remove("--diag2")
    out = sys.argv[1] if len(sys.argv) > 1 else "standalone__factorization_afm__recsys.s"
    open(out, "w").write(gen())
    print("wrote", out)
```

```python
import sys, struct
from asmkit import I, vr, auto_waits_paths, check_hazards, emit
import sched3

KNAME = "standalone__factorization_afm__recsys_kernel"

FS = 2176
PS = 272
CELL = 0
EOK = CELL
WOK = CELL + 64
POK = CELL + 68
HOK = CELL + 72
TRASH = CELL + 76
SUM = CELL + 128
BS = 512
U16 = 768
P16 = 896
H16 = 1024
T16 = 1152
T32 = 1280
WOFF = 2048
WRS = 192
E16 = WOFF + 64 * WRS + 128
LDS_TOTAL = E16 + 26 * FS

vW, vBIAS, vLINA, vEOP, vX, vACC = 128, 160, 176, 192, 208, 224
vBP = 112
vCEN = [64, 72, 80, 88]
vSTR = [96, 104]
vD, vIDX = 44, 43
vE, vS = 36, 37
vL, vN = 34, 35
vWt = 33
NIT = 10
vaS = [40, 41]
vLANE = 42

LOG2E = 1.4426950408889634
HC = 0.5 * LOG2E
DIAG = 0
PRIO = 2
NFIRST = 3
OUTPF = 0
REMAP = 1


def f32bits(x):
    return struct.unpack("<I", struct.pack("<f", x))[0]


def build_tables():
    W, half = sched3.schedule()
    sched3.check(W, half)
    data = []
    for (r0, r1), h in zip(W, half):
        pk = lambda a, b: (a * FS) | ((b * FS) << 16)
        ent = [pk(2 * r0[0], 2 * r1[0]), pk(2 * r0[0] + 1, 2 * r1[0] + 1)]
        for k in range(NIT + 1):
            kk = min(k, NIT - 1)
            ent.append(pk(r0[2][kk], r1[2][kk]))
        ent.append(NIT + 1)
        ent.append((0 if r0[1] else 0x0000ffff) | (0 if r1[1] else 0xffff0000))
        ent.append(1 if h else 0xffff)
        assert len(ent) == 16
        data += ent
    return data


def mfma(par, mt, k):
    acc = vACC + 16 * par + 4 * mt
    a = vW + (mt * 2 + k) * 4
    b = vBP + 8 * par + 4 * k
    c = (vBIAS + 4 * mt) if k == 0 else acc
    return I(f"v_mfma_f32_16x16x32_f16 {vr(acc,4)}, {vr(a,4)}, {vr(b,4)}, {vr(c,4)}", "mfma4",
             rd=list(range(a, a + 4)) + list(range(b, b + 4)), wr=range(acc, acc + 4), srcc=range(c, c + 4))


def smf(a, b):
    return I(f"v_smfmac_f32_16x16x64_f16 {vr(vD,4)}, {vr(a,4)}, {vr(b,8)}, v{vIDX}", "mfma4",
             rd=list(range(a, a + 4)) + list(range(b, b + 8)) + [vIDX], wr=range(vD, vD + 4), srcc=range(vD, vD + 4))


def prod(tau, i):
    d = vBP + 8 * (tau & 1) + i
    h = vCEN[tau] + i
    s = vSTR[tau & 1] + i
    return I(f"v_pk_mul_f16 v{d}, v{h}, v{s}", "valu", rd=[h, s], wr=[d])


def cvt(par, i):
    x = vACC + 16 * par + 2 * i
    return I(f"v_cvt_pk_f16_f32 v{vX+i}, |v{x}|, |v{x+1}|", "valu", rd=[x, x + 1], wr=[vX + i])


def ldc(dst, addr, c):
    return I(f"ds_read_b128 {vr(dst+4*c,4)}, v{addr} offset:{c*PS}", "dsr", rd=[addr], wr=range(dst + 4 * c, dst + 4 * c + 4))


def V(text, rd, wr, kind="valu"):
    return I(text, kind, rd=rd, wr=wr)


def S_(text):
    return I(text, "salu")


def fin_parts():
    return dict(
        e=V(f"v_add_f32 v{vE}, v{vD}, v{vD+2}", [vD, vD + 2], [vE]),
        s=V(f"v_add_f32 v{vS}, v{vD+1}, v{vD+3}", [vD + 1, vD + 3], [vS]),
        z0=V(f"v_mov_b64 {vr(vD,2)}, 0", [], [vD, vD + 1]),
        z1=V(f"v_mov_b64 {vr(vD+2,2)}, 0", [], [vD + 2, vD + 3]),
        x=V(f"v_exp_f32 v{vWt}, v{vE}", [vE], [vWt], "trans"),
        l=V(f"v_add_f32 v{vL}, v{vL}, v{vWt}", [vL, vWt], [vL]),
        n=V(f"v_fma_f32 v{vN}, v{vWt}, v{vS}, v{vN}", [vWt, vS, vN], [vN]))


def slot(tau):
    par = tau & 1
    prev = (tau + 3) % 4
    nxt = (tau + 1) % 4
    M = lambda mt, k: mfma(par, mt, k)
    C = [cvt(1 - par, i) for i in range(8)]
    P = [prod(nxt, i) for i in range(8)]
    P[0].rd |= set(range(vSTR[nxt & 1], vSTR[nxt & 1] + 8))
    SL = smf(vLINA + 4 * prev, vBP + 8 * (1 - par))
    SE = smf(vEOP + 4 * prev, vX)
    F = fin_parts()
    t0 = lambda x: x if tau == 0 else []
    t1 = lambda x: x if tau == 1 else []
    mov = [I("s_movrels_b32 s57, s83", "salu", rd=[1100], wr=[1057]), I("s_add_u32 m0, m0, 1", "salu", rd=[1100], wr=[1100, 1200])]
    spl = [I("s_and_b32 s58, s57, 0xffff", "salu", rd=[1057], wr=[1058, 1200]), I("s_lshr_b32 s59, s57, 16", "salu", rd=[1057], wr=[1059, 1200])]
    adr = [V(f"v_add_u32 v{vaS[0]}, s58, v{vLANE}", [vLANE, 1058], [vaS[0]]), V(f"v_add_u32 v{vaS[1]}, s59, v{vLANE}", [vLANE, 1059], [vaS[1]])]
    lds = []
    if tau == 1:
        lds = [ldc(vSTR[0], vaS[0], 0), ldc(vSTR[0], vaS[0], 1)]
    if tau == 2:
        lds = [ldc(vSTR[1], vaS[1], 0), ldc(vSTR[1], vaS[1], 1)]
    L = [M(0, 0), C[0], C[1]] + t1([F["x"]]) + [SL] + t0(mov) + t1([F["l"]]) + [M(0, 1), C[2], C[3]]
    L += [M(1, 0), C[4], C[5]] + t0(spl) + [M(1, 1), C[6], C[7]]
    L += [M(2, 0), P[0], P[1], SE] + t0(adr) + t1([F["n"]]) + [M(2, 1), P[2], P[3]]
    L += [M(3, 0), P[4], P[5]] + t1([S_("s_cmp_eq_u32 s60, s95")]) + [M(3, 1), P[6], P[7]]
    L += t0([F["e"], F["s"], F["z0"], F["z1"]]) + lds
    if tau == 1:
        L += [S_("s_cbranch_scc1 L_ep1")]
    return L


def flags():
    G = 48
    L = [V(f"v_and_b32 v238, 0x7fff7fff, v{G}", [G], [238]), V("v_and_b32 v237, 0x7fff7fff, v232", [232], [237]),
         V("v_and_b32 v38, 0x7fff, v38", [38], [38]),
         V("v_lshrrev_b32 v239, 3, v1", [1], [239]),
         V("v_max_u16_sdwa v238, v238, v238 dst_sel:DWORD dst_unused:UNUSED_PAD src0_sel:WORD_0 src1_sel:WORD_1", [238], [238]),
         V("v_max_u16_sdwa v237, v237, v237 dst_sel:DWORD dst_unused:UNUSED_PAD src0_sel:WORD_0 src1_sel:WORD_1", [237], [237]),
         S_("s_lshl_b32 s57, s54, 5"),
         V("v_lshl_add_u32 v239, v239, 2, s57", [239], [239]),
         V("v_mov_b32 v22, 1", [], [22]), V(f"v_mov_b32 v23, {TRASH}", [], [23]),
         V("v_cmp_le_u32 vcc, 0x2800, v238", [238], []), V(f"v_mov_b32 v24, {WOK}", [], [24]), V("v_mov_b32 v25, s44", [], [25]),
         V("v_cndmask_b32 v239, v23, v239, vcc", [23, 239], [239]),
         V("v_cmp_le_u32 vcc, 0x1c00, v237", [237], []), S_("s_nop 1"),
         V("v_cndmask_b32 v24, v23, v24, vcc", [23, 24], [24]),
         V("v_cmp_le_u32 vcc, 0x2400, v38", [38], []),
         I(f"ds_write_b32 v239, v22 offset:{EOK}", "dsw", rd=[239, 22]), I("ds_write_b32 v24, v22", "dsw", rd=[24, 22]),
         V("v_cndmask_b32 v25, v23, v25, vcc", [23, 25], [25]),
         I("ds_write_b32 v25, v22", "dsw", rd=[25, 22])]
    return L


def tail_prep():
    return [V("v_lshrrev_b32 v12, 4, v0", [0], [12]), V("v_mul_u32_u24 v12, 17, v12", [12], [12]), V("v_and_b32 v13, 15, v0", [0], [13]),
            V("v_add_lshl_u32 v12, v12, v13, 3", [12, 13], [12]),
            V("v_and_b32 v28, 31, v1", [1], [28]), V("v_mul_u32_u24 v13, 17, v28", [28], [13]), V("v_lshrrev_b32 v14, 5, v1", [1], [14]),
            S_("s_lshl_b32 s57, s52, 1"), V("v_add_u32 v14, s57, v14", [14], [14]),
            V("v_add_lshl_u32 v13, v13, v14, 3", [13, 14], [13]), V("v_lshlrev_b32 v15, 2, v14", [14], [15]),
            S_("s_lshl_b32 s57, s2, 4"), V("v_add_u32 v14, s57, v14", [14], [14]), V("v_lshlrev_b32 v14, 1, v14", [14], [14]),
            V("v_mov_b32 v19, 0", [], [19]), V("v_mov_b32 v26, 0x1f800000", [], [26]), V("v_mov_b32 v27, 0x71800000", [], [27]),
            V("v_mov_b32 v25, 0x207", [], [25]), V("v_cmp_eq_u32 s[58:59], 0, v28", [28], [])]


def epilogue(tau, half):
    F = fin_parts()
    C = [cvt(1, i) for i in range(8)]
    tp = tail_prep()
    L = [smf(vLINA + 4 * tau, vBP + 8)] + tp[0:5] + C + tp[5:7] + [smf(vEOP + 4 * tau, vX)] + tp[7:15] + [F["e"], F["s"], F["x"]]
    if half:
        L += [S_("s_mov_b32 exec_hi, 0")]
    else:
        L += [tp[15]]
    L += [F["l"], F["n"]]
    if half:
        L += [S_("s_mov_b32 exec_hi, -1"), tp[15]]
    L += tp[16:]
    return L


ORDER_FILE = None


def apply_order(sl, order):
    if isinstance(order, str):
        import json
        order = json.load(open(order))
    return [[s[i] for i in p] for s, p in zip(sl, order)]


def main_parts():
    pre = []
    for reg, ad in ((vCEN[0], 220), (vCEN[2], 222), (vCEN[1], 221), (vCEN[3], 223)):
        pre += [ldc(reg, ad, 0), ldc(reg, ad, 1)]
    pre += [ldc(vSTR[0], vaS[0], 0), ldc(vSTR[0], vaS[0], 1)]
    for i in range(8):
        pre.append(V(f"v_pk_mul_f16 v{vBP+i}, v{vCEN[2]+i}, v{vCEN[0]+i}", [vCEN[2] + i, vCEN[0] + i], [vBP + i]))
    for i in range(0, 8, 2):
        pre.append(V(f"v_mov_b64 {vr(vSTR[1]+i,2)}, {vr(vCEN[1]+i,2)}", [vCEN[1] + i, vCEN[1] + i + 1], [vSTR[1] + i, vSTR[1] + i + 1]))
    br0 = S_("s_branch L_slot2")
    br0.fixed = 2
    pre.append(br0)
    sl = [slot(t) for t in range(4)]
    if ORDER_FILE:
        sl = apply_order(sl, ORDER_FILE)
    ctl = [S_("s_sub_u32 s60, s60, 1"), S_("s_cmp_lg_u32 s60, 0")]
    if PRIO:
        ctl = [S_("s_sub_u32 s60, s60, 1"), S_(f"s_cmp_eq_u32 s60, {PRIO}"), S_("s_cbranch_scc1 L_prio"), S_("L_keep:"), S_("s_cmp_lg_u32 s60, 0")]
    sl[3] = sl[3][:-4] + ctl + sl[3][-4:] + [S_("s_cbranch_scc1 L_loop")]
    ep3 = epilogue(3, False)
    ep1 = epilogue(1, True)
    body = sl[0] + sl[1] + sl[2] + sl[3]
    paths = []
    for trips in range(0, 3):
        head = pre + sl[2] + sl[3] + body * trips
        paths += [head + ep3, head + sl[0] + sl[1] + ep1]
    auto_waits_paths(paths)
    errs = []
    for p in paths:
        errs += check_hazards(p, "p")
    errs = sorted(set(errs))
    if errs:
        print("\n".join(errs), file=sys.stderr)
        raise SystemExit("hazards")
    return pre, sl, ep3, ep1


HEADER = """
;
;
"""

def gen():
    tbl = build_tables()
    o = []
    A = o.append
    with open("standalone__factorization_afm__recsys.s.ref") as f:
        for line in f:
            if line.startswith("; @launch"):
                break
            if line.startswith("; Override") or line.startswith("; grid="):
                continue
            A(line.rstrip())
    A(f"; @launch grid=(256,1,1) block=(512,1,1) lds={LDS_TOTAL}")
    for line in HEADER.strip("\n").split("\n"):
        A(line)
    A('.amdgcn_target "amdgcn-amd-amdhsa--gfx950"')
    A(".text")
    A(f".globl {KNAME}")
    A(".p2align 8")
    A(f".type {KNAME},@function")
    A(f"{KNAME}:")

    def T(s):
        for l in s.strip("\n").split("\n"):
            l = l.strip()
            if l:
                A(l if l.endswith(":") else "  " + l)

    stamp_n = [0]
    rt_n = [0]

    def stamp(rt=False):
        if DIAG:
            k = stamp_n[0]
            stamp_n[0] += 1
            T(f"s_memtime s[{62+2*k}:{63+2*k}]") if k < 9 else None
            if rt and DIAG >= 2:
                T(f"s_memrealtime s[{32+2*rt_n[0]}:{33+2*rt_n[0]}]")
                rt_n[0] += 1

    if DIAG:
        T("s_memrealtime s[98:99]")
    stamp()
    NPF = "(L_pf_end-L_pc+127)/128"
    T(f"""
s_cmp_ge_u32 s2, 256
s_cbranch_scc1 L_end
@REMAP@
s_load_dwordx2 s[24:25], s[0:1], 0
s_load_dwordx2 s[28:29], s[0:1], 8
s_load_dwordx8 s[8:15], s[0:1], 32
s_load_dwordx2 s[48:49], s[0:1], 64
s_getpc_b64 s[22:23]
L_pc:
v_lshrrev_b32 v26, 6, v0
v_and_b32 v1, 63, v0
v_and_b32 v27, 15, v0
v_readfirstlane_b32 s52, v26
v_lshl_add_u32 v27, v26, 4, v27
v_lshlrev_b32 v27, 6, v27
v_min_u32 v27, L_pf_end-L_pc-4, v27
s_lshl_b32 s61, s52, 6
s_add_u32 s61, s61, L_tbl-L_pc
global_load_dword v103, v27, s[22:23]
s_lshr_b32 s53, s52, 1
s_and_b32 s54, s52, 1
s_mul_i32 s55, s53, 28
s_cmp_eq_u32 s53, 3
s_cselect_b32 s56, 4, 0
s_sub_u32 s55, s55, s56
s_mul_i32 s56, s2, 1664
s_add_u32 s55, s55, s56
s_mul_i32 s56, s54, 832
s_add_u32 s56, s55, s56
v_lshrrev_b32 v22, 3, v1
v_mul_u32_u24 v113, 104, v22
v_and_b32 v23, 7, v1
v_lshlrev_b32 v114, 4, v23
v_lshlrev_b32 v117, 7, v23
s_mov_b32 s26, 425984
s_mov_b32 s27, 0x20000
s_mov_b32 s30, 128000
s_mov_b32 s31, 0x20000
s_mov_b32 s50, 8192
s_mov_b32 s51, 0x20000
@SLICE@
s_lshl_b32 s57, s57, 3
s_add_u32 s57, s57, s52
s_lshl_b32 s57, s57, 10
s_waitcnt lgkmcnt(0)
buffer_load_dwordx4 v[96:99], v113, s[24:27], s56 offen
buffer_load_dwordx3 v[100:102], v113, s[24:27], s56 offen offset:16
buffer_load_dword v103, v117, s[28:31], s57 offen
""")
    if OUTPF:
        T("s_lshl_b32 s57, s2, 5\nv_mov_b32 v29, s57\nbuffer_load_dword v103, v29, s[48:51], 0 offen")
    T("""
s_load_dwordx16 s[80:95], s[22:23], s61
""")
    stamp()
    T(f"""
s_and_b32 s18, s52, 3
s_mov_b32 s20, {T16}
s_mov_b32 s44, {TRASH}
s_mov_b32 s21, {T32}
s_cmp_eq_u32 s18, 1
s_cselect_b32 s16, s12, s10
s_cselect_b32 s17, s13, s11
s_cselect_b32 s19, {f32bits(HC):#x}, 1.0
s_cselect_b32 s20, {H16}, s20
s_cselect_b32 s44, {HOK}, s44
s_cselect_b32 s45, 1, 0
s_cmp_eq_u32 s18, 2
s_cselect_b32 s16, s14, s16
s_cselect_b32 s17, s15, s17
s_cselect_b32 s20, {P16}, s20
s_cselect_b32 s44, {POK}, s44
s_cmp_eq_u32 s18, 0
s_cselect_b32 s21, {BS}, s21
s_cmp_eq_u32 s18, 3
s_cselect_b32 s21, {BS}, s21
v_lshlrev_b32 v115, 4, v0
v_lshlrev_b32 v116, 1, v1
global_load_dwordx4 v[104:107], v115, s[8:9]
global_load_dwordx4 v[108:111], v114, s[12:13]
global_load_ushort v38, v116, s[16:17]
""")

    T(f"""
v_lshrrev_b32 v25, 3, v0
v_add_u32 v118, s20, v116
v_lshlrev_b32 v119, 1, v25
s_mul_i32 s57, s53, {FS}
s_lshl_b32 s58, s54, 7
s_add_u32 s57, s57, s58
s_add_u32 s57, s57, {E16}
v_mul_u32_u24 v30, {PS}, v23
v_lshl_add_u32 v30, v22, 4, v30
v_add_u32 v30, s57, v30
v_lshrrev_b32 v26, 4, v25
v_mul_u32_u24 v25, {WRS}, v25
v_lshl_add_u32 v25, v26, 5, v25
v_add_u32 v25, v25, v114
v_lshlrev_b32 v24, 2, v1
v_mov_b32 v26, 0
ds_write_b32 v24, v26 offset:{CELL}
v_add_u32 v24, s21, v24
""")
    T(f"""
v_lshrrev_b32 v31, 4, v1
v_and_b32 v32, 15, v1
v_lshrrev_b32 v216, 2, v32
v_lshl_add_u32 v216, v31, 4, v216
v_mul_u32_u24 v216, {WRS}, v216
v_lshl_add_u32 v216, v31, 5, v216
v_and_b32 v26, 3, v1
v_lshl_add_u32 v216, v26, 3, v216
v_and_b32 v217, 0x30, v1
v_bfe_u32 v26, v1, 4, 1
v_lshrrev_b32 v27, 5, v1
v_and_b32 v28, 2, v1
v_lshlrev_b32 v28, 1, v28
v_lshl_add_u32 v218, v26, 6, v28
v_lshl_add_u32 v218, v27, 4, v218
v_lshl_add_u32 v219, v27, 6, v28
v_lshl_add_u32 v219, v26, 4, v219
v_add_u32 v219, {H16}, v219
v_and_b32 v26, 1, v1
v_mul_u32_u24 v26, {P16 - U16}, v26
v_add_u32 v218, v218, v26
v_add_u32 v218, {U16}, v218
""")
    T(f"""
v_mov_b64 v[{vLINA}:{vLINA+1}], 0
v_mov_b64 v[{vLINA+2}:{vLINA+3}], 0
v_mov_b64 v[{vEOP}:{vEOP+1}], 0
v_mov_b64 v[{vEOP+2}:{vEOP+3}], 0
""")
    for k in range(8):
        T(f"v_mov_b64 v[{vACC+16+2*k}:{vACC+17+2*k}], 0")
    for k in range(4):
        T(f"v_mov_b64 v[{vBP+8+2*k}:{vBP+9+2*k}], 0")
    T(f"""
s_mov_b32 s32, 0xcccccccc
s_mov_b32 s33, 0xcccccccc
v_mov_b32 v26, 0x44444444
v_mov_b32 v27, 0xeeeeeeee
v_cndmask_b32 v{vIDX}, v26, v27, s[32:33]
v_mul_u32_u24 v{vLANE}, {2*PS}, v31
v_lshl_add_u32 v{vLANE}, v32, 4, v{vLANE}
v_add_u32 v{vLANE}, {E16}, v{vLANE}
""")
    T("s_waitcnt lgkmcnt(0)")
    for k, (ra, rb) in enumerate([(220, 221), (222, 223), (vaS[0], vaS[1])]):
        T(f"s_and_b32 s57, s{80+k}, 0xffff\ns_lshr_b32 s58, s{80+k}, 16\nv_add_u32 v{ra}, s57, v{vLANE}\nv_add_u32 v{rb}, s58, v{vLANE}")
    T(f"""
s_mov_b32 m0, 0
s_mov_b32 s60, s93
s_mov_b32 s58, -1
s_mov_b32 s59, s94
v_mov_b32 v{vD+1}, 0xff800000
v_mov_b64 v[{vD+2}:{vD+3}], 0
v_cndmask_b32 v{vD}, 0, v{vD+1}, s[58:59]
v_mov_b32 v{vD+1}, 0
v_mov_b64 v[{vL}:{vL+1}], 0
""")
    if DIAG == 3:
        stamp()
    T(f"s_waitcnt vmcnt({4 + OUTPF})")
    stamp()
    G = 48

    def gather(t):
        T(f"buffer_load_dwordx4 v[{G+4*t}:{G+4*t+3}], v{96+t}, s[28:31], 0 offen")
    for t in range(7):
        T(f"v_lshl_add_u32 v{96+t}, v{96+t}, 7, v114")
        if t < NFIRST:
            gather(t)
    T(f"s_waitcnt vmcnt({NFIRST})")
    T("v_dot2_f32_bf16 v236, v104, v108, 0")
    for i in range(4):
        T(f"v_lshlrev_b32 v{224+2*i}, 16, v{104+i}\nv_and_b32 v{225+2*i}, 0xffff0000, v{104+i}")
        if i < 3:
            T(f"v_dot2_f32_bf16 v236, v{105+i}, v{109+i}, v236")
    T("v_lshlrev_b32 v38, 16, v38")
    for i in range(4):
        T(f"v_cvt_pk_f16_f32 v{232+i}, v{224+2*i}, v{225+2*i}")
    T(f"""
v_add_f32_dpp v236, v236, v236 quad_perm:[1,0,3,2] row_mask:0xf bank_mask:0xf
ds_write_b128 v25, v[232:235] offset:{WOFF}
ds_write_b32 v24, v38
v_add_f32_dpp v236, v236, v236 quad_perm:[2,3,0,1] row_mask:0xf bank_mask:0xf
v_mul_f32 v38, s19, v38
s_nop 0
v_add_f32_dpp v236, v236, v236 row_half_mirror row_mask:0xf bank_mask:0xf
v_cvt_f16_f32 v38, v38
v_mul_f32 v236, {f32bits(HC):#x}, v236
ds_write_b16 v118, v38
v_cvt_f16_f32 v236, v236
ds_write_b16 v119, v236 offset:{U16}
s_waitcnt lgkmcnt(0)
s_barrier
""")
    stamp()
    rd = []
    for mt in range(4):
        for k in range(2):
            for hf in range(2):
                r = vW + (mt * 2 + k) * 4 + 2 * hf
                rd.append(f"ds_read_b64_tr_b16 v[{r}:{r+1}], v216 offset:{WOFF + (8*k+4*hf)*WRS + mt*32}")
    for mt in range(4):
        r = vBIAS + 4 * mt
        rd.append(f"ds_read_b128 v[{r}:{r+3}], v217 offset:{BS + 64*mt}")
    T(f"""
s_mov_b32 exec_lo, 0x000f000f
s_mov_b32 exec_hi, 0x000f000f
ds_read2_b32 v[{vLINA}:{vLINA+1}], v218 offset0:0 offset1:2
ds_read2_b32 v[{vLINA+2}:{vLINA+3}], v218 offset0:8 offset1:10
s_mov_b32 exec_lo, 0x00050005
s_mov_b32 exec_hi, 0x00050005
ds_read2_b32 v[{vEOP}:{vEOP+1}], v219 offset0:0 offset1:8
ds_read2_b32 v[{vEOP+2}:{vEOP+3}], v219 offset0:2 offset1:10
s_mov_b64 exec, -1
""")
    rest = list(range(NFIRST, 7))
    per = -(-len(rd) // max(1, len(rest)))
    for t in rest:
        gather(t)
        for x in rd[:per]:
            T(x)
        rd = rd[per:]
    for x in rd:
        T(x)

    def conv(t):
        g = G + 4 * t
        T(f"s_waitcnt vmcnt({6-t})")
        for i in range(4):
            T(f"v_lshlrev_b32 v{224+2*i}, 16, v{g+i}\nv_and_b32 v{225+2*i}, 0xffff0000, v{g+i}")
        for i in range(4):
            T(f"v_cvt_pk_f16_f32 v{g+i}, v{224+2*i}, v{225+2*i}")
        T(f"ds_write_b128 v30, v[{g}:{g+3}] offset:{t*4*FS}")
    conv(0)
    T("s_waitcnt lgkmcnt(15)")
    for tau in range(1, 4):
        for base in (vLINA, vEOP):
            for rho in range(4):
                T(f"v_mov_b32_dpp v{base+4*tau+rho}, v{base+rho} row_shr:{4*tau} row_mask:0xf bank_mask:0xf bound_ctrl:0")
    conv(1); conv(2); conv(3)
    if DIAG != 3:
        stamp()
    conv(4); conv(5)
    T("s_cmp_ge_u32 s53, 2\ns_cbranch_scc1 L_skip6")
    conv(6)
    o.extend(emit(flags()))
    T("L_skip6:")
    if PRIO:
        T("s_cmp_lt_u32 s52, 4\ns_cbranch_scc1 L_noprio\ns_setprio 1\nL_noprio:")
    T("s_waitcnt vmcnt(0) lgkmcnt(0)\ns_barrier")
    stamp(True)
    pre, sl, ep3, ep1 = main_parts()
    o += emit(pre)
    A(".p2align 6")
    A("L_loop:")
    o += emit(sl[0])
    o += emit(sl[1])
    A("L_slot2:")
    o += emit(sl[2])
    o += emit(sl[3])
    o += emit(ep3)
    T("L_tail:")
    stamp(True)
    SCR = WOFF
    T(f"""
ds_write_b64 v12, v[{vL}:{vN}] offset:{SCR}
s_waitcnt lgkmcnt(0)
s_barrier
""")
    stamp()
    T(f"""
ds_read_b64 v[16:17], v13 offset:{SCR}
ds_read_b32 v18, v15 offset:{EOK}
ds_read_b96 v[20:22], v19 offset:{WOK}
s_waitcnt lgkmcnt(2)
""")
    for d in ["quad_perm:[1,0,3,2]", "quad_perm:[2,3,0,1]", "row_half_mirror", "row_mirror"]:
        T(f"v_add_f32_dpp v16, v16, v16 {d} row_mask:0xf bank_mask:0xf\nv_add_f32_dpp v17, v17, v17 {d} row_mask:0xf bank_mask:0xf\ns_nop 0")
    T(f"""
v_mov_b32 v30, v16
v_mov_b32 v31, v17
s_nop 0
v_permlane16_swap_b32 v16, v30
v_permlane16_swap_b32 v17, v31
s_mov_b64 exec, s[58:59]
v_add_f32 v16, v16, v30
v_add_f32 v17, v17, v31
v_rcp_f32 v30, v16
v_med3_f32 v26, v16, v26, v27
v_mul_f32 v17, v17, v30
v_cmp_neq_f32 vcc, v26, v16
v_cvt_pk_bf16_f32 v24, v17, v17
v_cmp_class_f32 s[46:47], v17, v25
buffer_store_short v24, v14, s[48:51], 0 offen
s_waitcnt lgkmcnt(0)
v_and_b32 v18, v18, v20
v_and_b32 v21, v21, v22
v_and_b32 v18, v18, v21
v_cmp_eq_u32 s[44:45], 0, v18
@DIAG@
s_or_b64 s[46:47], s[46:47], vcc
s_or_b64 s[44:45], s[44:45], s[46:47]
s_and_b64 s[44:45], s[44:45], exec
s_cbranch_scc1 L_slow
L_end:
s_endpgm
L_ep1:
""")
    o += emit(ep1)
    T("s_branch L_tail")
    if PRIO:
        T("L_prio:\ns_setprio 0\ns_branch L_keep")
    T("L_pf_end:")
    T("""
L_slow:
s_mov_b64 exec, -1
v_lshlrev_b32 v2, 1, v1
v_add_u32 v3, 4096, v2
""")
    for d in range(64):
        T(f"global_load_ushort v{128+d}, v{2 if d < 32 else 3}, s[8:9] offset:{(d % 32) * 128}")
    T(f"""
global_load_ushort v100, v2, s[10:11]
global_load_ushort v101, v2, s[12:13]
global_load_ushort v102, v2, s[14:15]
s_mul_i32 s36, s52, 6656
s_add_u32 s36, s36, {E16}
v_lshlrev_b32 v4, 2, v1
v_add_u32 v4, s36, v4
s_waitcnt vmcnt(0)
""")
    for d in range(64):
        T(f"v_lshlrev_b32 v{128+d}, 16, v{128+d}")
    T("""
v_lshlrev_b32 v100, 16, v100
v_lshlrev_b32 v101, 16, v101
v_lshlrev_b32 v102, 16, v102
s_mov_b32 s37, 0
L_slow_b:
s_cmp_eq_u32 s37, 0
s_cselect_b32 s38, s44, s45
s_cmp_eq_u32 s38, 0
s_cbranch_scc1 L_slow_next
s_lshl_b32 s39, s2, 4
s_lshl_b32 s40, s52, 1
s_add_u32 s39, s39, s40
s_add_u32 s39, s39, s37
s_mul_i32 s40, s39, 104
v_lshlrev_b32 v5, 2, v1
buffer_load_dword v6, v5, s[24:27], s40 offen
s_mov_b32 s41, 0
v_mov_b32 v7, v4
s_waitcnt vmcnt(0)
L_slow_rows:
v_readlane_b32 s42, v6, s41
s_nop 3
s_lshl_b32 s42, s42, 7
buffer_load_ushort v8, v2, s[28:31], s42 offen
s_waitcnt vmcnt(0)
v_lshlrev_b32 v8, 16, v8
ds_write_b32 v7, v8
v_add_u32 v7, 256, v7
s_add_u32 s41, s41, 1
s_cmp_lt_u32 s41, 26
s_cbranch_scc1 L_slow_rows
v_mov_b32 v110, 0xff800000
v_mov_b32 v111, 0
v_mov_b32 v112, 0
s_mov_b32 s41, 0
s_waitcnt lgkmcnt(0)
L_slow_i:
s_lshl_b32 s42, s41, 8
v_add_u32 v7, s42, v4
ds_read_b32 v103, v7
s_add_u32 s43, s41, 1
L_slow_j:
s_lshl_b32 s42, s43, 8
v_add_u32 v7, s42, v4
ds_read_b32 v104, v7
s_waitcnt lgkmcnt(0)
v_mul_f32 v105, v103, v104
v_cvt_pk_bf16_f32 v105, v105, v105
v_lshlrev_b32 v105, 16, v105
v_mov_b32 v106, v100
v_mul_f32 v107, v105, v102
""")
    for g in range(8):
        for k in range(8):
            T(f"v_readlane_b32 s{64+k}, v105, {8*g+k}")
        for k in range(8):
            T(f"v_fma_f32 v106, s{64+k}, v{128+8*g+k}, v106")
    T("v_max_f32 v106, 0, v106\nv_mul_f32 v106, v106, v101\ns_nop 1")
    for dd in ["quad_perm:[1,0,3,2]", "quad_perm:[2,3,0,1]", "row_half_mirror", "row_mirror"]:
        T(f"v_add_f32_dpp v106, v106, v106 {dd} row_mask:0xf bank_mask:0xf\nv_add_f32_dpp v107, v107, v107 {dd} row_mask:0xf bank_mask:0xf\ns_nop 0")
    for sw in ("v_permlane16_swap_b32", "v_permlane32_swap_b32"):
        T(f"""
v_mov_b32 v108, v106
v_mov_b32 v109, v107
s_nop 1
{sw} v106, v108
{sw} v107, v109
s_nop 1
v_add_f32 v106, v106, v108
v_add_f32 v107, v107, v109
""")
    T(f"""
v_mul_f32 v106, {f32bits(LOG2E):#x}, v106
v_max_f32 v108, v110, v106
v_sub_f32 v109, v110, v108
v_sub_f32 v106, v106, v108
v_exp_f32 v109, v109
v_exp_f32 v106, v106
v_mov_b32 v110, v108
s_nop 0
v_mul_f32 v111, v111, v109
v_mul_f32 v112, v112, v109
v_add_f32 v111, v111, v106
v_fma_f32 v112, v106, v107, v112
s_add_u32 s43, s43, 1
s_cmp_lt_u32 s43, 26
s_cbranch_scc1 L_slow_j
s_add_u32 s41, s41, 1
s_cmp_lt_u32 s41, 25
s_cbranch_scc1 L_slow_i
v_rcp_f32 v111, v111
s_lshl_b32 s39, s39, 1
v_mov_b32 v7, s39
v_mul_f32 v112, v112, v111
v_cvt_pk_bf16_f32 v112, v112, v112
s_waitcnt vmcnt(0)
s_mov_b64 exec, 1
buffer_store_short v112, v7, s[48:51], 0 offen
s_mov_b64 exec, -1
L_slow_next:
s_add_u32 s37, s37, 1
s_cmp_lt_u32 s37, 2
s_cbranch_scc1 L_slow_b
s_endpgm
""")
    if DIAG:
        ns = min(stamp_n[0], 9) - (0 if stamp_n[0] < 9 else 1)
        d = [f"s_memtime s[{62+2*ns}:{63+2*ns}]", "s_memrealtime s[96:97]", "s_load_dwordx2 s[40:41], s[0:1], 80", "s_waitcnt lgkmcnt(0)",
             "s_mov_b64 s[100:101], exec", "s_mov_b64 exec, 1", "s_lshl_b32 s42, s2, 3", "s_add_u32 s42, s42, s52", "s_lshl_b32 s42, s42, 6", "v_mov_b32 v2, s42",
             "v_mov_b32 v3, s98", "global_store_dword v2, v3, s[40:41]", "v_mov_b32 v3, s96", "global_store_dword v2, v3, s[40:41] offset:4"]
        for k in range(1, ns + 1):
            d += [f"s_sub_u32 s42, s{62+2*k}, s62", "v_mov_b32 v3, s42", f"global_store_dword v2, v3, s[40:41] offset:{4+4*k}"]
        d += ["s_getreg_b32 s42, hwreg(HW_REG_HW_ID)", "v_mov_b32 v3, s42", "global_store_dword v2, v3, s[40:41] offset:56"]
        for k in range(rt_n[0]):
            d += [f"s_sub_u32 s42, s{32+2*k}, s98", "v_mov_b32 v3, s42", f"global_store_dword v2, v3, s[40:41] offset:{44+4*k}"]
        d += ["s_mov_b64 exec, s[100:101]"]
        assert 62 + 2 * ns + 1 < 80
        txt = "\n".join("  " + x for x in d)
    else:
        txt = ""
    o[:] = [txt if l.strip() == "@DIAG@" else l for l in o]
    rm = "  s_lshr_b32 s3, s2, 3\n  s_and_b32 s4, s2, 7\n  s_lshl_b32 s4, s4, 5\n  s_add_u32 s2, s3, s4" if REMAP else ""
    o[:] = [rm if l.strip() == "@REMAP@" else l for l in o]
    sl_ = "  s_and_b32 s57, s2, 15" if REMAP else "  s_lshr_b32 s57, s2, 3\n  s_and_b32 s57, s57, 15"
    o[:] = [sl_ if l.strip() == "@SLICE@" else l for l in o]
    A(".p2align 6")
    A(".type L_tbl,@object")
    A("L_tbl:")
    for k in range(0, len(tbl), 16):
        A("  .long " + ", ".join(f"{x:#x}" for x in tbl[k:k + 16]))
    A('.section .rodata,"a"')
    A(".p2align 6")
    A(f".amdhsa_kernel {KNAME}")
    A("""  .amdhsa_next_free_vgpr 256
  .amdhsa_next_free_sgpr 102
  .amdhsa_accum_offset 256
  .amdhsa_group_segment_fixed_size 0
  .amdhsa_kernarg_size 88
  .amdhsa_user_sgpr_count 2
  .amdhsa_user_sgpr_kernarg_segment_ptr 1
  .amdhsa_system_sgpr_workgroup_id_x 1
.end_amdhsa_kernel""")
    return "\n".join(o) + "\n"


if __name__ == "__main__":
    for a in list(sys.argv):
        if a.startswith("--order_file="):
            ORDER_FILE = a.split("=")[1]
            sys.argv.remove(a)
    for a in list(sys.argv):
        for key in ("prio", "nfirst", "outpf", "remap"):
            if a.startswith(f"--{key}="):
                globals()[key.upper()] = int(a.split("=")[1])
                sys.argv.remove(a)
    if "--diag" in sys.argv:
        DIAG = 1
        sys.argv.remove("--diag")
    if "--diag3" in sys.argv:
        DIAG = 3
        sys.argv.remove("--diag3")
    if "--diag2" in sys.argv:
        DIAG = 2
        sys.argv.remove("--diag2")
    out = sys.argv[1] if len(sys.argv) > 1 else "standalone__factorization_afm__recsys.s"
    open(out, "w").write(gen())
    print("wrote", out)
```

```python
import sys, struct
from asmkit import I, vr, auto_waits_paths, check_hazards, emit
import sched3

KNAME = "standalone__factorization_afm__recsys_kernel"

FS = 2176
PS = 272
CELL = 0
EOK = CELL
WOK = CELL + 64
POK = CELL + 68
HOK = CELL + 72
TRASH = CELL + 76
SUM = CELL + 128
BS = 512
U16 = 768
P16 = 896
H16 = 1024
T16 = 1152
T32 = 1280
WOFF = 2048
WRS = 192
E16 = WOFF + 64 * WRS + 128
LDS_TOTAL = E16 + 26 * FS

vW, vBIAS, vLINA, vEOP, vX, vACC = 128, 160, 176, 192, 208, 224
vBP = 112
vCEN = [64, 72, 80, 88]
vSTR = [96, 104]
vD, vIDX = 44, 43
vE, vS = 36, 37
vL, vN = 34, 35
vWt = 33
NIT = 10
vaS = [40, 41]
vLANE = 42

LOG2E = 1.4426950408889634
HC = 0.5 * LOG2E
DIAG = 0
PRIO = 2
NFIRST = 2
OUTPF = 0
REMAP = 1
TBLPF = 1


def f32bits(x):
    return struct.unpack("<I", struct.pack("<f", x))[0]


def build_tables():
    W, half = sched3.schedule()
    sched3.check(W, half)
    data = []
    for (r0, r1), h in zip(W, half):
        pk = lambda a, b: (a * FS) | ((b * FS) << 16)
        ent = [pk(2 * r0[0], 2 * r1[0]), pk(2 * r0[0] + 1, 2 * r1[0] + 1)]
        for k in range(NIT + 1):
            kk = min(k, NIT - 1)
            ent.append(pk(r0[2][kk], r1[2][kk]))
        ent.append(NIT + 1)
        ent.append((0 if r0[1] else 0x0000ffff) | (0 if r1[1] else 0xffff0000))
        ent.append(1 if h else 0xffff)
        assert len(ent) == 16
        data += ent
    return data


def mfma(par, mt, k):
    acc = vACC + 16 * par + 4 * mt
    a = vW + (mt * 2 + k) * 4
    b = vBP + 8 * par + 4 * k
    c = (vBIAS + 4 * mt) if k == 0 else acc
    return I(f"v_mfma_f32_16x16x32_f16 {vr(acc,4)}, {vr(a,4)}, {vr(b,4)}, {vr(c,4)}", "mfma4",
             rd=list(range(a, a + 4)) + list(range(b, b + 4)), wr=range(acc, acc + 4), srcc=range(c, c + 4))


def smf(a, b):
    return I(f"v_smfmac_f32_16x16x64_f16 {vr(vD,4)}, {vr(a,4)}, {vr(b,8)}, v{vIDX}", "mfma4",
             rd=list(range(a, a + 4)) + list(range(b, b + 8)) + [vIDX], wr=range(vD, vD + 4), srcc=range(vD, vD + 4))


def prod(tau, i):
    d = vBP + 8 * (tau & 1) + i
    h = vCEN[tau] + i
    s = vSTR[tau & 1] + i
    return I(f"v_pk_mul_f16 v{d}, v{h}, v{s}", "valu", rd=[h, s], wr=[d])


def cvt(par, i):
    x = vACC + 16 * par + 2 * i
    return I(f"v_cvt_pk_f16_f32 v{vX+i}, |v{x}|, |v{x+1}|", "valu", rd=[x, x + 1], wr=[vX + i])


def ldc(dst, addr, c):
    return I(f"ds_read_b128 {vr(dst+4*c,4)}, v{addr} offset:{c*PS}", "dsr", rd=[addr], wr=range(dst + 4 * c, dst + 4 * c + 4))


def V(text, rd, wr, kind="valu"):
    return I(text, kind, rd=rd, wr=wr)


def S_(text):
    return I(text, "salu")


def fin_parts():
    return dict(
        e=V(f"v_add_f32 v{vE}, v{vD}, v{vD+2}", [vD, vD + 2], [vE]),
        s=V(f"v_add_f32 v{vS}, v{vD+1}, v{vD+3}", [vD + 1, vD + 3], [vS]),
        z0=V(f"v_mov_b64 {vr(vD,2)}, 0", [], [vD, vD + 1]),
        z1=V(f"v_mov_b64 {vr(vD+2,2)}, 0", [], [vD + 2, vD + 3]),
        x=V(f"v_exp_f32 v{vWt}, v{vE}", [vE], [vWt], "trans"),
        l=V(f"v_add_f32 v{vL}, v{vL}, v{vWt}", [vL, vWt], [vL]),
        n=V(f"v_fma_f32 v{vN}, v{vWt}, v{vS}, v{vN}", [vWt, vS, vN], [vN]))


def slot(tau):
    par = tau & 1
    prev = (tau + 3) % 4
    nxt = (tau + 1) % 4
    M = lambda mt, k: mfma(par, mt, k)
    C = [cvt(1 - par, i) for i in range(8)]
    P = [prod(nxt, i) for i in range(8)]
    P[0].rd |= set(range(vSTR[nxt & 1], vSTR[nxt & 1] + 8))
    SL = smf(vLINA + 4 * prev, vBP + 8 * (1 - par))
    SE = smf(vEOP + 4 * prev, vX)
    F = fin_parts()
    t0 = lambda x: x if tau == 0 else []
    t1 = lambda x: x if tau == 1 else []
    mov = [I("s_movrels_b32 s57, s83", "salu", rd=[1100], wr=[1057]), I("s_add_u32 m0, m0, 1", "salu", rd=[1100], wr=[1100, 1200])]
    spl = [I("s_and_b32 s58, s57, 0xffff", "salu", rd=[1057], wr=[1058, 1200]), I("s_lshr_b32 s59, s57, 16", "salu", rd=[1057], wr=[1059, 1200])]
    adr = [V(f"v_add_u32 v{vaS[0]}, s58, v{vLANE}", [vLANE, 1058], [vaS[0]]), V(f"v_add_u32 v{vaS[1]}, s59, v{vLANE}", [vLANE, 1059], [vaS[1]])]
    lds = []
    if tau == 1:
        lds = [ldc(vSTR[0], vaS[0], 0), ldc(vSTR[0], vaS[0], 1)]
    if tau == 2:
        lds = [ldc(vSTR[1], vaS[1], 0), ldc(vSTR[1], vaS[1], 1)]
    L = [M(0, 0), C[0], C[1]] + t1([F["x"]]) + [SL] + t0(mov) + t1([F["l"]]) + [M(0, 1), C[2], C[3]]
    L += [M(1, 0), C[4], C[5]] + t0(spl) + [M(1, 1), C[6], C[7]]
    L += [M(2, 0), P[0], P[1], SE] + t0(adr) + t1([F["n"]]) + [M(2, 1), P[2], P[3]]
    L += [M(3, 0), P[4], P[5]] + t1([S_("s_cmp_eq_u32 s60, s95")]) + [M(3, 1), P[6], P[7]]
    L += t0([F["e"], F["s"], F["z0"], F["z1"]]) + lds
    if tau == 1:
        L += [S_("s_cbranch_scc1 L_ep1")]
    return L


def flags():
    G = 48
    L = [V(f"v_and_b32 v238, 0x7fff7fff, v{G}", [G], [238]), V("v_and_b32 v237, 0x7fff7fff, v232", [232], [237]),
         V("v_and_b32 v38, 0x7fff, v38", [38], [38]),
         V("v_lshrrev_b32 v239, 3, v1", [1], [239]),
         V("v_max_u16_sdwa v238, v238, v238 dst_sel:DWORD dst_unused:UNUSED_PAD src0_sel:WORD_0 src1_sel:WORD_1", [238], [238]),
         V("v_max_u16_sdwa v237, v237, v237 dst_sel:DWORD dst_unused:UNUSED_PAD src0_sel:WORD_0 src1_sel:WORD_1", [237], [237]),
         S_("s_lshl_b32 s57, s54, 5"),
         V("v_lshl_add_u32 v239, v239, 2, s57", [239], [239]),
         V("v_mov_b32 v22, 1", [], [22]), V(f"v_mov_b32 v23, {TRASH}", [], [23]),
         V("v_cmp_le_u32 vcc, 0x2800, v238", [238], []), V(f"v_mov_b32 v24, {WOK}", [], [24]), V("v_mov_b32 v25, s44", [], [25]),
         V("v_cndmask_b32 v239, v23, v239, vcc", [23, 239], [239]),
         V("v_cmp_le_u32 vcc, 0x1c00, v237", [237], []), S_("s_nop 1"),
         V("v_cndmask_b32 v24, v23, v24, vcc", [23, 24], [24]),
         V("v_cmp_le_u32 vcc, 0x2400, v38", [38], []),
         I(f"ds_write_b32 v239, v22 offset:{EOK}", "dsw", rd=[239, 22]), I("ds_write_b32 v24, v22", "dsw", rd=[24, 22]),
         V("v_cndmask_b32 v25, v23, v25, vcc", [23, 25], [25]),
         I("ds_write_b32 v25, v22", "dsw", rd=[25, 22])]
    return L


def tail_prep():
    return [V("v_lshrrev_b32 v12, 4, v0", [0], [12]), V("v_mul_u32_u24 v12, 17, v12", [12], [12]), V("v_and_b32 v13, 15, v0", [0], [13]),
            V("v_add_lshl_u32 v12, v12, v13, 3", [12, 13], [12]),
            V("v_and_b32 v28, 31, v1", [1], [28]), V("v_mul_u32_u24 v13, 17, v28", [28], [13]), V("v_lshrrev_b32 v14, 5, v1", [1], [14]),
            S_("s_lshl_b32 s57, s52, 1"), V("v_add_u32 v14, s57, v14", [14], [14]),
            V("v_add_lshl_u32 v13, v13, v14, 3", [13, 14], [13]), V("v_lshlrev_b32 v15, 2, v14", [14], [15]),
            S_("s_lshl_b32 s57, s2, 4"), V("v_add_u32 v14, s57, v14", [14], [14]), V("v_lshlrev_b32 v14, 1, v14", [14], [14]),
            V("v_mov_b32 v19, 0", [], [19]), V("v_mov_b32 v26, 0x1f800000", [], [26]), V("v_mov_b32 v27, 0x71800000", [], [27]),
            V("v_mov_b32 v25, 0x207", [], [25]), V("v_cmp_eq_u32 s[58:59], 0, v28", [28], [])]


def epilogue(tau, half):
    F = fin_parts()
    C = [cvt(1, i) for i in range(8)]
    tp = tail_prep()
    L = [smf(vLINA + 4 * tau, vBP + 8)] + tp[0:5] + C + tp[5:7] + [smf(vEOP + 4 * tau, vX)] + tp[7:15] + [F["e"], F["s"], F["x"]]
    if half:
        L += [S_("s_mov_b32 exec_hi, 0")]
    else:
        L += [tp[15]]
    L += [F["l"], F["n"]]
    if half:
        L += [S_("s_mov_b32 exec_hi, -1"), tp[15]]
    L += tp[16:]
    return L


ORDER_FILE = None


def apply_order(sl, order):
    if isinstance(order, str):
        import json
        order = json.load(open(order))
    return [[s[i] for i in p] for s, p in zip(sl, order)]


def main_parts():
    pre = []
    for reg, ad in ((vCEN[0], 220), (vCEN[2], 222), (vCEN[1], 221), (vCEN[3], 223)):
        pre += [ldc(reg, ad, 0), ldc(reg, ad, 1)]
    pre += [ldc(vSTR[0], vaS[0], 0), ldc(vSTR[0], vaS[0], 1)]
    for i in range(8):
        pre.append(V(f"v_pk_mul_f16 v{vBP+i}, v{vCEN[2]+i}, v{vCEN[0]+i}", [vCEN[2] + i, vCEN[0] + i], [vBP + i]))
    for i in range(0, 8, 2):
        pre.append(V(f"v_mov_b64 {vr(vSTR[1]+i,2)}, {vr(vCEN[1]+i,2)}", [vCEN[1] + i, vCEN[1] + i + 1], [vSTR[1] + i, vSTR[1] + i + 1]))
    br0 = S_("s_branch L_slot2")
    br0.fixed = 2
    pre.append(br0)
    sl = [slot(t) for t in range(4)]
    if ORDER_FILE:
        sl = apply_order(sl, ORDER_FILE)
    ctl = [S_("s_sub_u32 s60, s60, 1"), S_("s_cmp_lg_u32 s60, 0")]
    if PRIO:
        ctl = [S_("s_sub_u32 s60, s60, 1"), S_(f"s_cmp_eq_u32 s60, {PRIO}"), S_("s_cbranch_scc1 L_prio"), S_("L_keep:"), S_("s_cmp_lg_u32 s60, 0")]
    sl[3] = sl[3][:-4] + ctl + sl[3][-4:] + [S_("s_cbranch_scc1 L_loop")]
    ep3 = epilogue(3, False)
    ep1 = epilogue(1, True)
    body = sl[0] + sl[1] + sl[2] + sl[3]
    paths = []
    for trips in range(0, 3):
        head = pre + sl[2] + sl[3] + body * trips
        paths += [head + ep3, head + sl[0] + sl[1] + ep1]
    auto_waits_paths(paths)
    errs = []
    for p in paths:
        errs += check_hazards(p, "p")
    errs = sorted(set(errs))
    if errs:
        print("\n".join(errs), file=sys.stderr)
        raise SystemExit("hazards")
    return pre, sl, ep3, ep1


HEADER = """
;
;
"""

def gen():
    tbl = build_tables()
    o = []
    A = o.append
    with open("standalone__factorization_afm__recsys.s.ref") as f:
        for line in f:
            if line.startswith("; @launch"):
                break
            if line.startswith("; Override") or line.startswith("; grid="):
                continue
            A(line.rstrip())
    A(f"; @launch grid=(256,1,1) block=(512,1,1) lds={LDS_TOTAL}")
    for line in HEADER.strip("\n").split("\n"):
        A(line)
    A('.amdgcn_target "amdgcn-amd-amdhsa--gfx950"')
    A(".text")
    A(f".globl {KNAME}")
    A(".p2align 8")
    A(f".type {KNAME},@function")
    A(f"{KNAME}:")

    def T(s):
        for l in s.strip("\n").split("\n"):
            l = l.strip()
            if l:
                A(l if l.endswith(":") else "  " + l)

    stamp_n = [0]
    rt_n = [0]

    def stamp(rt=False):
        if DIAG:
            k = stamp_n[0]
            stamp_n[0] += 1
            T(f"s_memtime s[{62+2*k}:{63+2*k}]") if k < 9 else None
            if rt and DIAG >= 2:
                T(f"s_memrealtime s[{32+2*rt_n[0]}:{33+2*rt_n[0]}]")
                rt_n[0] += 1

    if DIAG:
        T("s_memrealtime s[98:99]")
    stamp()
    NPF = "(L_pf_end-L_pc+127)/128"
    T(f"""
s_cmp_ge_u32 s2, 256
s_cbranch_scc1 L_end
@REMAP@
s_load_dwordx2 s[24:25], s[0:1], 0
s_load_dwordx2 s[28:29], s[0:1], 8
s_load_dwordx8 s[8:15], s[0:1], 32
s_load_dwordx2 s[48:49], s[0:1], 64
s_getpc_b64 s[22:23]
L_pc:
v_lshrrev_b32 v26, 6, v0
v_and_b32 v1, 63, v0
v_and_b32 v27, 15, v0
v_readfirstlane_b32 s52, v26
v_lshl_add_u32 v27, v26, 4, v27
v_lshlrev_b32 v27, 6, v27
v_min_u32 v27, L_pf_end-L_pc-4, v27
s_lshl_b32 s61, s52, 6
s_add_u32 s61, s61, L_tbl-L_pc
global_load_dword v103, v27, s[22:23]
s_lshr_b32 s53, s52, 1
s_and_b32 s54, s52, 1
s_mul_i32 s55, s53, 28
s_cmp_eq_u32 s53, 3
s_cselect_b32 s56, 4, 0
s_sub_u32 s55, s55, s56
s_mul_i32 s56, s2, 1664
s_add_u32 s55, s55, s56
s_mul_i32 s56, s54, 832
s_add_u32 s56, s55, s56
v_lshrrev_b32 v22, 3, v1
v_mul_u32_u24 v113, 104, v22
v_and_b32 v23, 7, v1
v_lshlrev_b32 v114, 4, v23
v_lshlrev_b32 v117, 7, v23
s_mov_b32 s26, 425984
s_mov_b32 s27, 0x20000
s_mov_b32 s30, 128000
s_mov_b32 s31, 0x20000
s_mov_b32 s50, 8192
s_mov_b32 s51, 0x20000
@SLICE@
s_lshl_b32 s57, s57, 3
s_add_u32 s57, s57, s52
s_lshl_b32 s57, s57, 10
s_waitcnt lgkmcnt(0)
buffer_load_dwordx4 v[96:99], v113, s[24:27], s56 offen
buffer_load_dwordx3 v[100:102], v113, s[24:27], s56 offen offset:16
""")
    if TBLPF:
        T("buffer_load_dword v103, v117, s[28:31], s57 offen")
    if OUTPF:
        T("s_lshl_b32 s57, s2, 5\nv_mov_b32 v29, s57\nbuffer_load_dword v103, v29, s[48:51], 0 offen")
    T("""
s_load_dwordx16 s[80:95], s[22:23], s61
""")
    stamp()
    T(f"""
s_and_b32 s18, s52, 3
s_mov_b32 s20, {T16}
s_mov_b32 s44, {TRASH}
s_mov_b32 s21, {T32}
s_cmp_eq_u32 s18, 1
s_cselect_b32 s16, s12, s10
s_cselect_b32 s17, s13, s11
s_cselect_b32 s19, {f32bits(HC):#x}, 1.0
s_cselect_b32 s20, {H16}, s20
s_cselect_b32 s44, {HOK}, s44

s_cmp_eq_u32 s18, 2
s_cselect_b32 s16, s14, s16
s_cselect_b32 s17, s15, s17
s_cselect_b32 s20, {P16}, s20
s_cselect_b32 s44, {POK}, s44
s_cmp_eq_u32 s18, 0
s_cselect_b32 s21, {BS}, s21
s_cmp_eq_u32 s18, 3
s_cselect_b32 s21, {BS}, s21
v_lshlrev_b32 v115, 4, v0
v_lshlrev_b32 v116, 1, v1
global_load_dwordx4 v[104:107], v115, s[8:9]
global_load_dwordx4 v[108:111], v114, s[12:13]
global_load_ushort v38, v116, s[16:17]
""")

    T(f"""
v_lshrrev_b32 v25, 3, v0
v_add_u32 v118, s20, v116
v_lshlrev_b32 v119, 1, v25
s_mul_i32 s57, s53, {FS}
s_lshl_b32 s58, s54, 7
s_add_u32 s57, s57, s58
s_add_u32 s57, s57, {E16}
v_mul_u32_u24 v30, {PS}, v23
v_lshl_add_u32 v30, v22, 4, v30
v_add_u32 v30, s57, v30
v_lshrrev_b32 v26, 4, v25
v_mul_u32_u24 v25, {WRS}, v25
v_lshl_add_u32 v25, v26, 5, v25
v_add_u32 v25, v25, v114
v_lshlrev_b32 v24, 2, v1
v_mov_b32 v26, 0
ds_write_b32 v24, v26 offset:{CELL}
v_add_u32 v24, s21, v24
""")
    T(f"""
v_lshrrev_b32 v31, 4, v1
v_and_b32 v32, 15, v1
v_lshrrev_b32 v216, 2, v32
v_lshl_add_u32 v216, v31, 4, v216
v_mul_u32_u24 v216, {WRS}, v216
v_lshl_add_u32 v216, v31, 5, v216
v_and_b32 v26, 3, v1
v_lshl_add_u32 v216, v26, 3, v216
v_and_b32 v217, 0x30, v1
v_bfe_u32 v26, v1, 4, 1
v_lshrrev_b32 v27, 5, v1
v_and_b32 v28, 2, v1
v_lshlrev_b32 v28, 1, v28
v_lshl_add_u32 v218, v26, 6, v28
v_lshl_add_u32 v218, v27, 4, v218
v_lshl_add_u32 v219, v27, 6, v28
v_lshl_add_u32 v219, v26, 4, v219
v_add_u32 v219, {H16}, v219
v_and_b32 v26, 1, v1
v_mul_u32_u24 v26, {P16 - U16}, v26
v_add_u32 v218, v218, v26
v_add_u32 v218, {U16}, v218
""")
    T(f"""
v_mov_b64 v[{vLINA}:{vLINA+1}], 0
v_mov_b64 v[{vLINA+2}:{vLINA+3}], 0
v_mov_b64 v[{vEOP}:{vEOP+1}], 0
v_mov_b64 v[{vEOP+2}:{vEOP+3}], 0
""")
    for k in range(8):
        T(f"v_mov_b64 v[{vACC+16+2*k}:{vACC+17+2*k}], 0")
    for k in range(4):
        T(f"v_mov_b64 v[{vBP+8+2*k}:{vBP+9+2*k}], 0")
    T(f"""
s_mov_b32 s32, 0xcccccccc
s_mov_b32 s33, 0xcccccccc
v_mov_b32 v26, 0x44444444
v_mov_b32 v27, 0xeeeeeeee
v_cndmask_b32 v{vIDX}, v26, v27, s[32:33]
v_mul_u32_u24 v{vLANE}, {2*PS}, v31
v_lshl_add_u32 v{vLANE}, v32, 4, v{vLANE}
v_add_u32 v{vLANE}, {E16}, v{vLANE}
""")
    T("s_waitcnt lgkmcnt(0)")
    for k, (ra, rb) in enumerate([(220, 221), (222, 223), (vaS[0], vaS[1])]):
        T(f"s_and_b32 s57, s{80+k}, 0xffff\ns_lshr_b32 s58, s{80+k}, 16\nv_add_u32 v{ra}, s57, v{vLANE}\nv_add_u32 v{rb}, s58, v{vLANE}")
    T(f"""
s_mov_b32 m0, 0
s_mov_b32 s60, s93
s_mov_b32 s58, -1
s_mov_b32 s59, s94
v_mov_b32 v{vD+1}, 0xff800000
v_mov_b64 v[{vD+2}:{vD+3}], 0
v_cndmask_b32 v{vD}, 0, v{vD+1}, s[58:59]
v_mov_b32 v{vD+1}, 0
v_mov_b64 v[{vL}:{vL+1}], 0
""")
    if DIAG == 3:
        stamp()
    T(f"s_waitcnt vmcnt({3 + TBLPF + OUTPF})")
    stamp()
    G = 48

    def gather(t):
        T(f"buffer_load_dwordx4 v[{G+4*t}:{G+4*t+3}], v{96+t}, s[28:31], 0 offen")
    for t in range(7):
        T(f"v_lshl_add_u32 v{96+t}, v{96+t}, 7, v114")
        if t < NFIRST:
            gather(t)
    T(f"s_waitcnt vmcnt({NFIRST})")
    T("v_dot2_f32_bf16 v236, v104, v108, 0")
    for i in range(4):
        T(f"v_lshlrev_b32 v{224+2*i}, 16, v{104+i}\nv_and_b32 v{225+2*i}, 0xffff0000, v{104+i}")
        if i < 3:
            T(f"v_dot2_f32_bf16 v236, v{105+i}, v{109+i}, v236")
    T("v_lshlrev_b32 v38, 16, v38")
    for i in range(4):
        T(f"v_cvt_pk_f16_f32 v{232+i}, v{224+2*i}, v{225+2*i}")
    T(f"""
v_add_f32_dpp v236, v236, v236 quad_perm:[1,0,3,2] row_mask:0xf bank_mask:0xf
ds_write_b128 v25, v[232:235] offset:{WOFF}
ds_write_b32 v24, v38
v_add_f32_dpp v236, v236, v236 quad_perm:[2,3,0,1] row_mask:0xf bank_mask:0xf
v_mul_f32 v38, s19, v38
s_nop 0
v_add_f32_dpp v236, v236, v236 row_half_mirror row_mask:0xf bank_mask:0xf
v_cvt_f16_f32 v38, v38
v_mul_f32 v236, {f32bits(HC):#x}, v236
ds_write_b16 v118, v38
v_cvt_f16_f32 v236, v236
ds_write_b16 v119, v236 offset:{U16}
s_waitcnt lgkmcnt(0)
s_barrier
""")
    stamp()
    rd = []
    for mt in range(4):
        for k in range(2):
            for hf in range(2):
                r = vW + (mt * 2 + k) * 4 + 2 * hf
                rd.append(f"ds_read_b64_tr_b16 v[{r}:{r+1}], v216 offset:{WOFF + (8*k+4*hf)*WRS + mt*32}")
    for mt in range(4):
        r = vBIAS + 4 * mt
        rd.append(f"ds_read_b128 v[{r}:{r+3}], v217 offset:{BS + 64*mt}")
    T(f"""
s_mov_b32 exec_lo, 0x000f000f
s_mov_b32 exec_hi, 0x000f000f
ds_read2_b32 v[{vLINA}:{vLINA+1}], v218 offset0:0 offset1:2
ds_read2_b32 v[{vLINA+2}:{vLINA+3}], v218 offset0:8 offset1:10
s_mov_b32 exec_lo, 0x00050005
s_mov_b32 exec_hi, 0x00050005
ds_read2_b32 v[{vEOP}:{vEOP+1}], v219 offset0:0 offset1:8
ds_read2_b32 v[{vEOP+2}:{vEOP+3}], v219 offset0:2 offset1:10
s_mov_b64 exec, -1
""")
    rest = list(range(NFIRST, 7))
    per = -(-len(rd) // max(1, len(rest)))
    for t in rest:
        gather(t)
        for x in rd[:per]:
            T(x)
        rd = rd[per:]
    for x in rd:
        T(x)

    def conv(t):
        g = G + 4 * t
        T(f"s_waitcnt vmcnt({6-t})")
        for i in range(4):
            T(f"v_lshlrev_b32 v{224+2*i}, 16, v{g+i}\nv_and_b32 v{225+2*i}, 0xffff0000, v{g+i}")
        for i in range(4):
            T(f"v_cvt_pk_f16_f32 v{g+i}, v{224+2*i}, v{225+2*i}")
        T(f"ds_write_b128 v30, v[{g}:{g+3}] offset:{t*4*FS}")
    conv(0)
    T("s_waitcnt lgkmcnt(14)")
    for tau in range(1, 4):
        for base in (vLINA, vEOP):
            for rho in range(4):
                T(f"v_mov_b32_dpp v{base+4*tau+rho}, v{base+rho} row_shr:{4*tau} row_mask:0xf bank_mask:0xf bound_ctrl:0")
    conv(1); conv(2); conv(3)
    if DIAG != 3:
        stamp()
    conv(4); conv(5)
    T("s_cmp_ge_u32 s53, 2\ns_cbranch_scc1 L_skip6")
    conv(6)
    o.extend(emit(flags()))
    T("L_skip6:")
    if PRIO:
        T("s_cmp_lt_u32 s52, 4\ns_cbranch_scc1 L_noprio\ns_setprio 1\nL_noprio:")
    T("s_waitcnt vmcnt(0) lgkmcnt(0)\ns_barrier")
    stamp(True)
    pre, sl, ep3, ep1 = main_parts()
    o += emit(pre)
    A(".p2align 6")
    A("L_loop:")
    o += emit(sl[0])
    o += emit(sl[1])
    A("L_slot2:")
    o += emit(sl[2])
    o += emit(sl[3])
    o += emit(ep3)
    T("L_tail:")
    stamp(True)
    SCR = WOFF
    T(f"""
ds_write_b64 v12, v[{vL}:{vN}] offset:{SCR}
s_waitcnt lgkmcnt(0)
s_barrier
""")
    stamp()
    T(f"""
ds_read_b64 v[16:17], v13 offset:{SCR}
ds_read_b32 v18, v15 offset:{EOK}
ds_read_b96 v[20:22], v19 offset:{WOK}
s_waitcnt lgkmcnt(2)
""")
    for d in ["quad_perm:[1,0,3,2]", "quad_perm:[2,3,0,1]", "row_half_mirror", "row_mirror"]:
        T(f"v_add_f32_dpp v16, v16, v16 {d} row_mask:0xf bank_mask:0xf\nv_add_f32_dpp v17, v17, v17 {d} row_mask:0xf bank_mask:0xf\ns_nop 0")
    T(f"""
v_mov_b32 v30, v16
v_mov_b32 v31, v17
s_nop 0
v_permlane16_swap_b32 v16, v30
v_permlane16_swap_b32 v17, v31
s_mov_b64 exec, s[58:59]
v_add_f32 v16, v16, v30
v_add_f32 v17, v17, v31
v_rcp_f32 v30, v16
v_med3_f32 v26, v16, v26, v27
v_mul_f32 v17, v17, v30
v_cmp_neq_f32 vcc, v26, v16
v_cvt_pk_bf16_f32 v24, v17, v17
v_cmp_class_f32 s[46:47], v17, v25
buffer_store_short v24, v14, s[48:51], 0 offen
s_waitcnt lgkmcnt(0)
v_and_b32 v18, v18, v20
v_and_b32 v21, v21, v22
v_and_b32 v18, v18, v21
v_cmp_eq_u32 s[44:45], 0, v18
@DIAG@
s_or_b64 s[46:47], s[46:47], vcc
s_or_b64 s[44:45], s[44:45], s[46:47]
s_and_b64 s[44:45], s[44:45], exec
s_cbranch_scc1 L_slow
L_end:
s_endpgm
L_ep1:
""")
    o += emit(ep1)
    T("s_branch L_tail")
    if PRIO:
        T("L_prio:\ns_setprio 0\ns_branch L_keep")
    T("L_pf_end:")
    T("""
L_slow:
s_mov_b64 exec, -1
v_lshlrev_b32 v2, 1, v1
v_add_u32 v3, 4096, v2
""")
    for d in range(64):
        T(f"global_load_ushort v{128+d}, v{2 if d < 32 else 3}, s[8:9] offset:{(d % 32) * 128}")
    T(f"""
global_load_ushort v100, v2, s[10:11]
global_load_ushort v101, v2, s[12:13]
global_load_ushort v102, v2, s[14:15]
s_mul_i32 s36, s52, 6656
s_add_u32 s36, s36, {E16}
v_lshlrev_b32 v4, 2, v1
v_add_u32 v4, s36, v4
s_waitcnt vmcnt(0)
""")
    for d in range(64):
        T(f"v_lshlrev_b32 v{128+d}, 16, v{128+d}")
    T("""
v_lshlrev_b32 v100, 16, v100
v_lshlrev_b32 v101, 16, v101
v_lshlrev_b32 v102, 16, v102
s_mov_b32 s37, 0
L_slow_b:
s_cmp_eq_u32 s37, 0
s_cselect_b32 s38, s44, s45
s_cmp_eq_u32 s38, 0
s_cbranch_scc1 L_slow_next
s_lshl_b32 s39, s2, 4
s_lshl_b32 s40, s52, 1
s_add_u32 s39, s39, s40
s_add_u32 s39, s39, s37
s_mul_i32 s40, s39, 104
v_lshlrev_b32 v5, 2, v1
buffer_load_dword v6, v5, s[24:27], s40 offen
s_mov_b32 s41, 0
v_mov_b32 v7, v4
s_waitcnt vmcnt(0)
L_slow_rows:
v_readlane_b32 s42, v6, s41
s_nop 3
s_lshl_b32 s42, s42, 7
buffer_load_ushort v8, v2, s[28:31], s42 offen
s_waitcnt vmcnt(0)
v_lshlrev_b32 v8, 16, v8
ds_write_b32 v7, v8
v_add_u32 v7, 256, v7
s_add_u32 s41, s41, 1
s_cmp_lt_u32 s41, 26
s_cbranch_scc1 L_slow_rows
v_mov_b32 v110, 0xff800000
v_mov_b32 v111, 0
v_mov_b32 v112, 0
s_mov_b32 s41, 0
s_waitcnt lgkmcnt(0)
L_slow_i:
s_lshl_b32 s42, s41, 8
v_add_u32 v7, s42, v4
ds_read_b32 v103, v7
s_add_u32 s43, s41, 1
L_slow_j:
s_lshl_b32 s42, s43, 8
v_add_u32 v7, s42, v4
ds_read_b32 v104, v7
s_waitcnt lgkmcnt(0)
v_mul_f32 v105, v103, v104
v_cvt_pk_bf16_f32 v105, v105, v105
v_lshlrev_b32 v105, 16, v105
v_mov_b32 v106, v100
v_mul_f32 v107, v105, v102
""")
    for g in range(8):
        for k in range(8):
            T(f"v_readlane_b32 s{64+k}, v105, {8*g+k}")
        for k in range(8):
            T(f"v_fma_f32 v106, s{64+k}, v{128+8*g+k}, v106")
    T("v_max_f32 v106, 0, v106\nv_mul_f32 v106, v106, v101\ns_nop 1")
    for dd in ["quad_perm:[1,0,3,2]", "quad_perm:[2,3,0,1]", "row_half_mirror", "row_mirror"]:
        T(f"v_add_f32_dpp v106, v106, v106 {dd} row_mask:0xf bank_mask:0xf\nv_add_f32_dpp v107, v107, v107 {dd} row_mask:0xf bank_mask:0xf\ns_nop 0")
    for sw in ("v_permlane16_swap_b32", "v_permlane32_swap_b32"):
        T(f"""
v_mov_b32 v108, v106
v_mov_b32 v109, v107
s_nop 1
{sw} v106, v108
{sw} v107, v109
s_nop 1
v_add_f32 v106, v106, v108
v_add_f32 v107, v107, v109
""")
    T(f"""
v_mul_f32 v106, {f32bits(LOG2E):#x}, v106
v_max_f32 v108, v110, v106
v_sub_f32 v109, v110, v108
v_sub_f32 v106, v106, v108
v_exp_f32 v109, v109
v_exp_f32 v106, v106
v_mov_b32 v110, v108
s_nop 0
v_mul_f32 v111, v111, v109
v_mul_f32 v112, v112, v109
v_add_f32 v111, v111, v106
v_fma_f32 v112, v106, v107, v112
s_add_u32 s43, s43, 1
s_cmp_lt_u32 s43, 26
s_cbranch_scc1 L_slow_j
s_add_u32 s41, s41, 1
s_cmp_lt_u32 s41, 25
s_cbranch_scc1 L_slow_i
v_rcp_f32 v111, v111
s_lshl_b32 s39, s39, 1
v_mov_b32 v7, s39
v_mul_f32 v112, v112, v111
v_cvt_pk_bf16_f32 v112, v112, v112
s_waitcnt vmcnt(0)
s_mov_b64 exec, 1
buffer_store_short v112, v7, s[48:51], 0 offen
s_mov_b64 exec, -1
L_slow_next:
s_add_u32 s37, s37, 1
s_cmp_lt_u32 s37, 2
s_cbranch_scc1 L_slow_b
s_endpgm
""")
    if DIAG:
        ns = min(stamp_n[0], 9) - (0 if stamp_n[0] < 9 else 1)
        d = [f"s_memtime s[{62+2*ns}:{63+2*ns}]", "s_memrealtime s[96:97]", "s_load_dwordx2 s[40:41], s[0:1], 80", "s_waitcnt lgkmcnt(0)",
             "s_mov_b64 s[100:101], exec", "s_mov_b64 exec, 1", "s_lshl_b32 s42, s2, 3", "s_add_u32 s42, s42, s52", "s_lshl_b32 s42, s42, 6", "v_mov_b32 v2, s42",
             "v_mov_b32 v3, s98", "global_store_dword v2, v3, s[40:41]", "v_mov_b32 v3, s96", "global_store_dword v2, v3, s[40:41] offset:4"]
        for k in range(1, ns + 1):
            d += [f"s_sub_u32 s42, s{62+2*k}, s62", "v_mov_b32 v3, s42", f"global_store_dword v2, v3, s[40:41] offset:{4+4*k}"]
        d += ["s_getreg_b32 s42, hwreg(HW_REG_HW_ID)", "v_mov_b32 v3, s42", "global_store_dword v2, v3, s[40:41] offset:56"]
        for k in range(rt_n[0]):
            d += [f"s_sub_u32 s42, s{32+2*k}, s98", "v_mov_b32 v3, s42", f"global_store_dword v2, v3, s[40:41] offset:{44+4*k}"]
        d += ["s_mov_b64 exec, s[100:101]"]
        assert 62 + 2 * ns + 1 < 80
        txt = "\n".join("  " + x for x in d)
    else:
        txt = ""
    o[:] = [txt if l.strip() == "@DIAG@" else l for l in o]
    rm = "  s_lshr_b32 s3, s2, 3\n  s_and_b32 s4, s2, 7\n  s_lshl_b32 s4, s4, 5\n  s_add_u32 s2, s3, s4" if REMAP else ""
    o[:] = [rm if l.strip() == "@REMAP@" else l for l in o]
    sl_ = "  s_and_b32 s57, s2, 15" if REMAP else "  s_lshr_b32 s57, s2, 3\n  s_and_b32 s57, s57, 15"
    o[:] = [sl_ if l.strip() == "@SLICE@" else l for l in o]
    A(".p2align 6")
    A(".type L_tbl,@object")
    A("L_tbl:")
    for k in range(0, len(tbl), 16):
        A("  .long " + ", ".join(f"{x:#x}" for x in tbl[k:k + 16]))
    A('.section .rodata,"a"')
    A(".p2align 6")
    A(f".amdhsa_kernel {KNAME}")
    A("""  .amdhsa_next_free_vgpr 256
  .amdhsa_next_free_sgpr 102
  .amdhsa_accum_offset 256
  .amdhsa_group_segment_fixed_size 0
  .amdhsa_kernarg_size 88
  .amdhsa_user_sgpr_count 2
  .amdhsa_user_sgpr_kernarg_segment_ptr 1
  .amdhsa_system_sgpr_workgroup_id_x 1
.end_amdhsa_kernel""")
    return "\n".join(o) + "\n"


if __name__ == "__main__":
    for a in list(sys.argv):
        if a.startswith("--order_file="):
            ORDER_FILE = a.split("=")[1]
            sys.argv.remove(a)
    for a in list(sys.argv):
        for key in ("prio", "nfirst", "outpf", "remap", "tblpf"):
            if a.startswith(f"--{key}="):
                globals()[key.upper()] = int(a.split("=")[1])
                sys.argv.remove(a)
    if "--diag" in sys.argv:
        DIAG = 1
        sys.argv.remove("--diag")
    if "--diag3" in sys.argv:
        DIAG = 3
        sys.argv.remove("--diag3")
    if "--diag2" in sys.argv:
        DIAG = 2
        sys.argv.remove("--diag2")
    out = sys.argv[1] if len(sys.argv) > 1 else "standalone__factorization_afm__recsys.s"
    open(out, "w").write(gen())
    print("wrote", out)
```

```python
import subprocess
class Bench:
    def __init__(self):
        self.kernels=[]
        self.runs=[]
    def add(self,name,body,iters,units_per_iter,blocks,grid=256,nv=128,lds=0,pre="",agpr=0,align=6,padnops=0,tail=None):
        t=[]
        t.append(f".globl {name}\n.p2align 8\n.type {name},@function\n{name}:")
        t.append("  s_load_dwordx2 s[4:5], s[0:1], 0\n  s_load_dwordx2 s[6:7], s[0:1], 8")
        t.append("  v_and_b32 v0, 0x3ff, v0")
        t.append("  s_waitcnt lgkmcnt(0)")
        t.append("  v_lshlrev_b32 v1, 2, v0")
        for r in range(2,nv):
            t.append(f"  global_load_dword v{r}, v1, s[6:7] offset:{(r*4*7)%4096}")
            if r%32==0: t.append("  s_waitcnt vmcnt(0)")
        t.append("  s_waitcnt vmcnt(0)")
        for r in range(agpr):
            t.append(f"  v_accvgpr_write_b32 a{r}, v{2+(r%(nv-2))}")
        t.append(pre)
        t.append("  s_barrier")
        t.append("  s_memrealtime s[20:21]\n  s_memtime s[8:9]\n  s_waitcnt lgkmcnt(0)")
        t.append(f"  s_mov_b32 s10, {iters}")
        t.append(f"  .p2align {align}")
        t.append("  s_nop 0\n"*padnops)
        t.append(f"L_{name}:")
        t.append(body)
        t.append(tail.replace("@L",f"L_{name}") if tail else f"  s_sub_u32 s10, s10, 1\n  s_cmp_lg_u32 s10, 0\n  s_cbranch_scc1 L_{name}")
        t.append("  s_nop 15\n  s_nop 15\n s_waitcnt vmcnt(0) lgkmcnt(0)")
        t.append("  s_memtime s[12:13]\n  s_memrealtime s[22:23]\n  s_waitcnt lgkmcnt(0)\n  s_sub_u32 s22, s22, s20")
        t.append("  s_sub_u32 s12, s12, s8")
        t.append("  v_lshrrev_b32 v1, 6, v0")
        t.append("  s_mul_i32 s14, s2, NW_"+name)
        t.append("  v_add_u32 v1, s14, v1\n  v_lshlrev_b32 v1, 2, v1\n  v_mov_b32 v2, s12")
        t.append("  v_and_b32 v3, 63, v0\n  v_cmp_eq_u32 vcc, 0, v3\n  s_and_saveexec_b64 s[16:17], vcc\n s_cbranch_execz E_"+name)
        t.append("  global_store_dword v1, v2, s[4:5]\n  v_mov_b32 v2, s22\n  v_add_u32 v1, 0x200000, v1\n  global_store_dword v1, v2, s[4:5]")
        t.append(f"E_{name}:\n  s_endpgm")
        self.kernels.append((name,"\n".join(t),nv,agpr))
        self.runs.append((name,grid,blocks,lds,iters*units_per_iter))
    def write(self,fn):
        out=[".amdgcn_target \"amdgcn-amd-amdhsa--gfx950\"",".text"]
        meta=[]
        names=[]
        for (name,text,nv,agpr),(n,grid,block,lds,div) in zip(self.kernels,self.runs):
            out.append(f".set NW_{name}, {block//64}")
            out.append(text)
        out.append('.section .rodata,"a"')
        for (name,text,nv,agpr),(n,grid,block,lds,div) in zip(self.kernels,self.runs):
            acc=(nv+3)//4*4
            out.append(f".p2align 6\n.amdhsa_kernel {name}\n  .amdhsa_next_free_vgpr {acc+agpr}\n  .amdhsa_next_free_sgpr 64\n  .amdhsa_accum_offset {acc}\n  .amdhsa_group_segment_fixed_size 0\n  .amdhsa_kernarg_size 16\n  .amdhsa_user_sgpr_count 2\n  .amdhsa_user_sgpr_kernarg_segment_ptr 1\n  .amdhsa_system_sgpr_workgroup_id_x 1\n  .amdhsa_float_denorm_mode_32 3\n.end_amdhsa_kernel")
            meta.append(f"""  - .name: {name}
    .symbol: {name}.kd
    .kernarg_segment_size: 16
    .kernarg_segment_align: 8
    .group_segment_fixed_size: 0
    .private_segment_fixed_size: 0
    .wavefront_size: 64
    .sgpr_count: 64
    .vgpr_count: {acc+agpr}
    .max_flat_workgroup_size: 1024
    .args:
      - {{.name: o, .size: 8, .offset: 0, .value_kind: global_buffer, .address_space: global}}
      - {{.name: i, .size: 8, .offset: 8, .value_kind: global_buffer, .address_space: global}}""")
        out.append(".amdgpu_metadata\n---\namdhsa.version: [1, 2]\namdhsa.kernels:\n"+"\n".join(meta)+"\n...\n.end_amdgpu_metadata")
        open(fn+".s","w").write("\n".join(out)+"\n")
        open(fn+".list","w").write("".join(f"{n} {g} {b} {l} {d}\n" for n,g,b,l,d in self.runs))
        r=subprocess.run(["clang","-x","assembler","-target","amdgcn-amd-amdhsa","-mcpu=gfx950",fn+".s","-o",fn+".co"],capture_output=True,text=True)
        print(r.stderr[:3000])
        assert r.returncode==0
```

```python
from benchlib import *
B=Bench()
W=128; BI=160; ACC=[224,240]; BP=[112,120]; X=208; LA=176
def m16(acc,a,b,c): return f"  v_mfma_f32_16x16x32_f16 v[{acc}:{acc+3}], v[{a}:{a+3}], v[{b}:{b+3}], v[{c}:{c+3}]"
def smf(a,b): return f"  v_smfmac_f32_16x16x64_f16 v[60:63], v[{a}:{a+3}], v[{b}:{b+7}], v59"
def pair(p,opt):
    acc=ACC[p%2]; bp=BP[p%2]; bpn=BP[(p+1)%2]; accp=ACC[(p+1)%2]
    M=[m16(acc+4*mt, W+(mt*2+k)*4, bp+4*k, (BI+4*mt) if k==0 else acc+4*mt) for mt in range(4) for k in range(2)]
    PK=[f"  v_pk_mul_f16 v{bpn+i}, v{64+8*(p%4)+i}, v{48+i}" for i in range(8)]
    op="v_cvt_pkrtz_f16_f32" if opt.get("rtz") else "v_cvt_pk_f16_f32"
    CV=[f"  {op} v{X+i}, |v{accp+2*i}|, |v{accp+2*i+1}|" for i in range(8)]
    FM=[f"  v_fma_f32 v38, |v{accp+i}|, v{192+i}, v38" for i in range(16)]
    SL=smf(LA+4*(p%4),bp); SE=smf(LA+16+4*(p%4),X)
    out=[]
    v=[]
    if not opt.get('nopk'): v+=PK
    if opt.get('fma'): v+=FM
    elif not opt.get('nocvt'): v=[x for pr in zip(CV,PK)for x in pr] if not opt.get('nopk') else CV
    n=len(v); slots=8; pos=0
    for j,m in enumerate(M):
        out.append(m)
        k=(n*(j+1))//8-(n*j)//8
        out+=v[pos:pos+k]; pos+=k
        if j==1 and not opt.get('nosl'): out.append(SL)
        if j==6 and not opt.get('nose') and not opt.get('fma'): out.append(SE)
        if j==3 and opt.get('ds') and p%4<2: out.append(f"  ds_read_b128 v[{40+0}:{43}], v2 offset:{p*1024}")
    return out
sp="  v_mov_b32 v59, 0x44444444\n  s_mov_b32 s40, 0x00070007\n  s_mov_b32 s41, 0x00070007\n"+"\n".join(f"  v_cndmask_b32 v{LA+i}, 0, v{LA+i}, s[40:41]" for i in range(32))+"\n  v_and_b32 v2, 63, v0\n  v_lshlrev_b32 v2, 4, v2\n"
V={"full":{}, "rtz":{"rtz":1}, "full2":{}, "rtz2":{"rtz":1}}
for k,o in V.items():
    body="\n".join(l for p in range(4) for l in pair(p,o))
    B.add(f"p16_{k}",body,100,4,512,nv=256,lds=16384,pre=sp)
B.write("e5")
```

```python
import sys, struct
from asmkit import I, vr, auto_waits_paths, check_hazards, emit
import sched3

KNAME = "standalone__factorization_afm__recsys_kernel"

FS = 2176
PS = 272
CELL = 0
EOK = CELL
WOK = CELL + 64
POK = CELL + 68
HOK = CELL + 72
TRASH = CELL + 76
SUM = CELL + 128
BS = 512
U16 = 768
P16 = 896
H16 = 1024
T16 = 1152
T32 = 1280
WOFF = 2048
WRS = 192
E16 = WOFF + 64 * WRS + 128
LDS_TOTAL = E16 + 26 * FS

vW, vBIAS, vLINA, vEOP, vX, vACC = 128, 160, 176, 192, 208, 224
vBP = 112
vCEN = [64, 72, 80, 88]
vSTR = [96, 104]
vD, vIDX = 44, 43
vE, vS = 36, 37
vL, vN = 34, 35
vWt = 33
NIT = 10
vaS = [40, 41]
vLANE = 42

LOG2E = 1.4426950408889634
HC = 0.5 * LOG2E
DIAG = 0
PRIO = 2
NFIRST = 2
OUTPF = 0
REMAP = 1
TBLPF = 1


def f32bits(x):
    return struct.unpack("<I", struct.pack("<f", x))[0]


def build_tables():
    W, half = sched3.schedule()
    sched3.check(W, half)
    data = []
    for (r0, r1), h in zip(W, half):
        pk = lambda a, b: (a * FS) | ((b * FS) << 16)
        ent = [pk(2 * r0[0], 2 * r1[0]), pk(2 * r0[0] + 1, 2 * r1[0] + 1)]
        for k in range(NIT + 1):
            kk = min(k, NIT - 1)
            ent.append(pk(r0[2][kk], r1[2][kk]))
        ent.append(NIT + 1)
        ent.append((0 if r0[1] else 0x0000ffff) | (0 if r1[1] else 0xffff0000))
        ent.append(1 if h else 0xffff)
        assert len(ent) == 16
        data += ent
    return data


def mfma(par, mt, k):
    acc = vACC + 16 * par + 4 * mt
    a = vW + (mt * 2 + k) * 4
    b = vBP + 8 * par + 4 * k
    c = (vBIAS + 4 * mt) if k == 0 else acc
    return I(f"v_mfma_f32_16x16x32_f16 {vr(acc,4)}, {vr(a,4)}, {vr(b,4)}, {vr(c,4)}", "mfma4",
             rd=list(range(a, a + 4)) + list(range(b, b + 4)), wr=range(acc, acc + 4), srcc=range(c, c + 4))


def smf(a, b):
    return I(f"v_smfmac_f32_16x16x64_f16 {vr(vD,4)}, {vr(a,4)}, {vr(b,8)}, v{vIDX}", "mfma4",
             rd=list(range(a, a + 4)) + list(range(b, b + 8)) + [vIDX], wr=range(vD, vD + 4), srcc=range(vD, vD + 4))


def prod(tau, i):
    d = vBP + 8 * (tau & 1) + i
    h = vCEN[tau] + i
    s = vSTR[tau & 1] + i
    return I(f"v_pk_mul_f16 v{d}, v{h}, v{s}", "valu", rd=[h, s], wr=[d])


def cvt(par, i):
    x = vACC + 16 * par + 2 * i
    return I(f"v_cvt_pk_f16_f32 v{vX+i}, |v{x}|, |v{x+1}|", "valu", rd=[x, x + 1], wr=[vX + i])


def ldc(dst, addr, c):
    return I(f"ds_read_b128 {vr(dst+4*c,4)}, v{addr} offset:{c*PS}", "dsr", rd=[addr], wr=range(dst + 4 * c, dst + 4 * c + 4))


def V(text, rd, wr, kind="valu"):
    return I(text, kind, rd=rd, wr=wr)


def S_(text):
    return I(text, "salu")


def fin_parts():
    return dict(
        e=V(f"v_add_f32 v{vE}, v{vD}, v{vD+2}", [vD, vD + 2], [vE]),
        s=V(f"v_add_f32 v{vS}, v{vD+1}, v{vD+3}", [vD + 1, vD + 3], [vS]),
        z0=V(f"v_mov_b64 {vr(vD,2)}, 0", [], [vD, vD + 1]),
        z1=V(f"v_mov_b64 {vr(vD+2,2)}, 0", [], [vD + 2, vD + 3]),
        x=V(f"v_exp_f32 v{vWt}, v{vE}", [vE], [vWt], "trans"),
        l=V(f"v_add_f32 v{vL}, v{vL}, v{vWt}", [vL, vWt], [vL]),
        n=V(f"v_fma_f32 v{vN}, v{vWt}, v{vS}, v{vN}", [vWt, vS, vN], [vN]))


def slot(tau):
    par = tau & 1
    prev = (tau + 3) % 4
    nxt = (tau + 1) % 4
    M = lambda mt, k: mfma(par, mt, k)
    C = [cvt(1 - par, i) for i in range(8)]
    P = [prod(nxt, i) for i in range(8)]
    P[0].rd |= set(range(vSTR[nxt & 1], vSTR[nxt & 1] + 8))
    SL = smf(vLINA + 4 * prev, vBP + 8 * (1 - par))
    SE = smf(vEOP + 4 * prev, vX)
    F = fin_parts()
    t0 = lambda x: x if tau == 0 else []
    t1 = lambda x: x if tau == 1 else []
    mov = [I("s_movrels_b32 s57, s83", "salu", rd=[1100], wr=[1057]), I("s_add_u32 m0, m0, 1", "salu", rd=[1100], wr=[1100, 1200])]
    spl = [I("s_and_b32 s58, s57, 0xffff", "salu", rd=[1057], wr=[1058, 1200]), I("s_lshr_b32 s59, s57, 16", "salu", rd=[1057], wr=[1059, 1200])]
    adr = [V(f"v_add_u32 v{vaS[0]}, s58, v{vLANE}", [vLANE, 1058], [vaS[0]]), V(f"v_add_u32 v{vaS[1]}, s59, v{vLANE}", [vLANE, 1059], [vaS[1]])]
    lds = []
    if tau == 1:
        lds = [ldc(vSTR[0], vaS[0], 0), ldc(vSTR[0], vaS[0], 1)]
    if tau == 2:
        lds = [ldc(vSTR[1], vaS[1], 0), ldc(vSTR[1], vaS[1], 1)]
    L = [M(0, 0), C[0], C[1]] + t1([F["x"]]) + [SL] + t0(mov) + t1([F["l"]]) + [M(0, 1), C[2], C[3]]
    L += [M(1, 0), C[4], C[5]] + t0(spl) + [M(1, 1), C[6], C[7]]
    L += [M(2, 0), P[0], P[1], SE] + t0(adr) + t1([F["n"]]) + [M(2, 1), P[2], P[3]]
    L += [M(3, 0), P[4], P[5]] + t1([S_("s_cmp_eq_u32 s60, s95")]) + [M(3, 1), P[6], P[7]]
    L += t0([F["e"], F["s"], F["z0"], F["z1"]]) + lds
    if tau == 1:
        L += [S_("s_cbranch_scc1 L_ep1")]
    return L


def flags():
    G = 48
    L = [V(f"v_and_b32 v238, 0x7fff7fff, v{G}", [G], [238]), V("v_and_b32 v237, 0x7fff7fff, v232", [232], [237]),
         V("v_and_b32 v38, 0x7fff, v38", [38], [38]),
         V("v_lshrrev_b32 v239, 3, v1", [1], [239]),
         V("v_max_u16_sdwa v238, v238, v238 dst_sel:DWORD dst_unused:UNUSED_PAD src0_sel:WORD_0 src1_sel:WORD_1", [238], [238]),
         V("v_max_u16_sdwa v237, v237, v237 dst_sel:DWORD dst_unused:UNUSED_PAD src0_sel:WORD_0 src1_sel:WORD_1", [237], [237]),
         S_("s_lshl_b32 s57, s54, 5"),
         V("v_lshl_add_u32 v239, v239, 2, s57", [239], [239]),
         V("v_mov_b32 v22, 1", [], [22]), V(f"v_mov_b32 v23, {TRASH}", [], [23]),
         V("v_cmp_le_u32 vcc, 0x2800, v238", [238], []), V(f"v_mov_b32 v24, {WOK}", [], [24]), V("v_mov_b32 v25, s44", [], [25]),
         V("v_cndmask_b32 v239, v23, v239, vcc", [23, 239], [239]),
         V("v_cmp_le_u32 vcc, 0x1c00, v237", [237], []), S_("s_nop 1"),
         V("v_cndmask_b32 v24, v23, v24, vcc", [23, 24], [24]),
         V("v_cmp_le_u32 vcc, 0x2400, v38", [38], []),
         I(f"ds_write_b32 v239, v22 offset:{EOK}", "dsw", rd=[239, 22]), I("ds_write_b32 v24, v22", "dsw", rd=[24, 22]),
         V("v_cndmask_b32 v25, v23, v25, vcc", [23, 25], [25]),
         I("ds_write_b32 v25, v22", "dsw", rd=[25, 22])]
    return L


def tail_prep():
    return [V("v_lshrrev_b32 v12, 4, v0", [0], [12]), V("v_mul_u32_u24 v12, 17, v12", [12], [12]), V("v_and_b32 v13, 15, v0", [0], [13]),
            V("v_add_lshl_u32 v12, v12, v13, 3", [12, 13], [12]),
            V("v_and_b32 v28, 31, v1", [1], [28]), V("v_mul_u32_u24 v13, 17, v28", [28], [13]), V("v_lshrrev_b32 v14, 5, v1", [1], [14]),
            S_("s_lshl_b32 s57, s52, 1"), V("v_add_u32 v14, s57, v14", [14], [14]),
            V("v_add_lshl_u32 v13, v13, v14, 3", [13, 14], [13]), V("v_lshlrev_b32 v15, 2, v14", [14], [15]),
            S_("s_lshl_b32 s57, s2, 4"), V("v_add_u32 v14, s57, v14", [14], [14]), V("v_lshlrev_b32 v14, 1, v14", [14], [14]),
            V("v_mov_b32 v19, 0", [], [19]), V("v_mov_b32 v26, 0x1f800000", [], [26]), V("v_mov_b32 v27, 0x71800000", [], [27]),
            V("v_mov_b32 v25, 0x207", [], [25]), V("v_cmp_eq_u32 s[58:59], 0, v28", [28], [])]


def epilogue(tau, half):
    F = fin_parts()
    C = [cvt(1, i) for i in range(8)]
    tp = tail_prep()
    L = [smf(vLINA + 4 * tau, vBP + 8)] + tp[0:5] + C + tp[5:7] + [smf(vEOP + 4 * tau, vX)] + tp[7:15] + [F["e"], F["s"], F["x"]]
    if half:
        L += [S_("s_mov_b32 exec_hi, 0")]
    else:
        L += [tp[15]]
    L += [F["l"], F["n"]]
    if half:
        L += [S_("s_mov_b32 exec_hi, -1"), tp[15]]
    L += tp[16:]
    return L


ORDER_FILE = None


def apply_order(sl, order):
    if isinstance(order, str):
        import json
        order = json.load(open(order))
    return [[s[i] for i in p] for s, p in zip(sl, order)]


def main_parts():
    pre = []
    for reg, ad in ((vCEN[0], 220), (vCEN[2], 222), (vCEN[1], 221), (vCEN[3], 223)):
        pre += [ldc(reg, ad, 0), ldc(reg, ad, 1)]
    pre += [ldc(vSTR[0], vaS[0], 0), ldc(vSTR[0], vaS[0], 1)]
    for i in range(8):
        pre.append(V(f"v_pk_mul_f16 v{vBP+i}, v{vCEN[2]+i}, v{vCEN[0]+i}", [vCEN[2] + i, vCEN[0] + i], [vBP + i]))
    for i in range(0, 8, 2):
        pre.append(V(f"v_mov_b64 {vr(vSTR[1]+i,2)}, {vr(vCEN[1]+i,2)}", [vCEN[1] + i, vCEN[1] + i + 1], [vSTR[1] + i, vSTR[1] + i + 1]))
    br0 = S_("s_branch L_slot2")
    br0.fixed = 2
    pre.append(br0)
    sl = [slot(t) for t in range(4)]
    if ORDER_FILE:
        sl = apply_order(sl, ORDER_FILE)
    ctl = [S_("s_sub_u32 s60, s60, 1"), S_("s_cmp_lg_u32 s60, 0")]
    if PRIO:
        ctl = [S_("s_sub_u32 s60, s60, 1"), S_(f"s_cmp_eq_u32 s60, {PRIO}"), S_("s_cbranch_scc1 L_prio"), S_("L_keep:"), S_("s_cmp_lg_u32 s60, 0")]
    sl[3] = sl[3][:-4] + ctl + sl[3][-4:] + [S_("s_cbranch_scc1 L_loop")]
    ep3 = epilogue(3, False)
    ep1 = epilogue(1, True)
    body = sl[0] + sl[1] + sl[2] + sl[3]
    paths = []
    for trips in range(0, 3):
        head = pre + sl[2] + sl[3] + body * trips
        paths += [head + ep3, head + sl[0] + sl[1] + ep1]
    auto_waits_paths(paths)
    errs = []
    for p in paths:
        errs += check_hazards(p, "p")
    errs = sorted(set(errs))
    if errs:
        print("\n".join(errs), file=sys.stderr)
        raise SystemExit("hazards")
    return pre, sl, ep3, ep1


HEADER = """
;
;
"""

def gen():
    tbl = build_tables()
    o = []
    A = o.append
    with open("standalone__factorization_afm__recsys.s.ref") as f:
        for line in f:
            if line.startswith("; @launch"):
                break
            if line.startswith("; Override") or line.startswith("; grid="):
                continue
            A(line.rstrip())
    A(f"; @launch grid=(256,1,1) block=(512,1,1) lds={LDS_TOTAL}")
    for line in HEADER.strip("\n").split("\n"):
        A(line)
    A('.amdgcn_target "amdgcn-amd-amdhsa--gfx950"')
    A(".text")
    A(f".globl {KNAME}")
    A(".p2align 8")
    A(f".type {KNAME},@function")
    A(f"{KNAME}:")

    def T(s):
        for l in s.strip("\n").split("\n"):
            l = l.strip()
            if l:
                A(l if l.endswith(":") else "  " + l)

    stamp_n = [0]
    rt_n = [0]

    def stamp(rt=False):
        if DIAG:
            k = stamp_n[0]
            stamp_n[0] += 1
            T(f"s_memtime s[{62+2*k}:{63+2*k}]") if k < 9 else None
            if rt and DIAG >= 2:
                T(f"s_memrealtime s[{32+2*rt_n[0]}:{33+2*rt_n[0]}]")
                rt_n[0] += 1

    if DIAG:
        T("s_memrealtime s[98:99]")
    stamp()
    NPF = "(L_pf_end-L_pc+127)/128"
    T(f"""
s_cmp_ge_u32 s2, 256
s_cbranch_scc1 L_end
@REMAP@
s_load_dwordx2 s[24:25], s[0:1], 0
s_load_dwordx2 s[28:29], s[0:1], 8
s_load_dwordx8 s[8:15], s[0:1], 32
s_getpc_b64 s[22:23]
L_pc:
v_lshrrev_b32 v26, 6, v0
v_and_b32 v1, 63, v0
v_and_b32 v27, 15, v0
v_readfirstlane_b32 s52, v26
v_lshl_add_u32 v27, v26, 4, v27
v_lshlrev_b32 v27, 6, v27
v_min_u32 v27, L_pf_end-L_pc-4, v27
s_lshl_b32 s61, s52, 6
s_add_u32 s61, s61, L_tbl-L_pc
global_load_dword v103, v27, s[22:23]
s_lshr_b32 s53, s52, 1
s_and_b32 s54, s52, 1
s_mul_i32 s55, s53, 28
s_cmp_eq_u32 s53, 3
s_cselect_b32 s56, 4, 0
s_sub_u32 s55, s55, s56
s_mul_i32 s56, s2, 1664
s_add_u32 s55, s55, s56
s_mul_i32 s56, s54, 832
s_add_u32 s56, s55, s56
v_lshrrev_b32 v22, 3, v1
v_mul_u32_u24 v113, 104, v22
v_and_b32 v23, 7, v1
v_lshlrev_b32 v114, 4, v23
v_lshlrev_b32 v117, 7, v23
s_mov_b32 s26, 425984
s_mov_b32 s27, 0x20000
s_mov_b32 s30, 128000
s_mov_b32 s31, 0x20000
s_mov_b32 s50, 8192
s_mov_b32 s51, 0x20000
@SLICE@
s_lshl_b32 s57, s57, 3
s_add_u32 s57, s57, s52
s_lshl_b32 s57, s57, 10
s_waitcnt lgkmcnt(0)
buffer_load_dwordx4 v[96:99], v113, s[24:27], s56 offen
buffer_load_dwordx3 v[100:102], v113, s[24:27], s56 offen offset:16
""")
    if TBLPF:
        T("buffer_load_dword v103, v117, s[28:31], s57 offen")
    if OUTPF:
        T("s_lshl_b32 s57, s2, 5\nv_mov_b32 v29, s57\nbuffer_load_dword v103, v29, s[48:51], 0 offen")
    T("""
s_load_dwordx16 s[80:95], s[22:23], s61
s_load_dwordx2 s[48:49], s[0:1], 64
""")
    stamp()
    T(f"""
s_and_b32 s18, s52, 3
s_mov_b32 s20, {T16}
s_mov_b32 s44, {TRASH}
s_mov_b32 s21, {T32}
s_cmp_eq_u32 s18, 1
s_cselect_b32 s16, s12, s10
s_cselect_b32 s17, s13, s11
s_cselect_b32 s19, {f32bits(HC):#x}, 1.0
s_cselect_b32 s20, {H16}, s20
s_cselect_b32 s44, {HOK}, s44

s_cmp_eq_u32 s18, 2
s_cselect_b32 s16, s14, s16
s_cselect_b32 s17, s15, s17
s_cselect_b32 s20, {P16}, s20
s_cselect_b32 s44, {POK}, s44
s_cmp_eq_u32 s18, 0
s_cselect_b32 s21, {BS}, s21
s_cmp_eq_u32 s18, 3
s_cselect_b32 s21, {BS}, s21
v_lshlrev_b32 v115, 4, v0
v_lshlrev_b32 v116, 1, v1
global_load_dwordx4 v[104:107], v115, s[8:9]
global_load_dwordx4 v[108:111], v114, s[12:13]
global_load_ushort v38, v116, s[16:17]
""")

    T(f"""
v_lshrrev_b32 v25, 3, v0
v_add_u32 v118, s20, v116
v_lshlrev_b32 v119, 1, v25
s_mul_i32 s57, s53, {FS}
s_lshl_b32 s58, s54, 7
s_add_u32 s57, s57, s58
s_add_u32 s57, s57, {E16}
v_mul_u32_u24 v30, {PS}, v23
v_lshl_add_u32 v30, v22, 4, v30
v_add_u32 v30, s57, v30
v_lshrrev_b32 v26, 4, v25
v_mul_u32_u24 v25, {WRS}, v25
v_lshl_add_u32 v25, v26, 5, v25
v_add_u32 v25, v25, v114
v_lshlrev_b32 v24, 2, v1
v_mov_b32 v26, 0
ds_write_b32 v24, v26 offset:{CELL}
v_add_u32 v24, s21, v24
""")
    T(f"""
v_lshrrev_b32 v31, 4, v1
v_and_b32 v32, 15, v1
v_lshrrev_b32 v216, 2, v32
v_lshl_add_u32 v216, v31, 4, v216
v_mul_u32_u24 v216, {WRS}, v216
v_lshl_add_u32 v216, v31, 5, v216
v_and_b32 v26, 3, v1
v_lshl_add_u32 v216, v26, 3, v216
v_and_b32 v217, 0x30, v1
v_bfe_u32 v26, v1, 4, 1
v_lshrrev_b32 v27, 5, v1
v_and_b32 v28, 2, v1
v_lshlrev_b32 v28, 1, v28
v_lshl_add_u32 v218, v26, 6, v28
v_lshl_add_u32 v218, v27, 4, v218
v_lshl_add_u32 v219, v27, 6, v28
v_lshl_add_u32 v219, v26, 4, v219
v_add_u32 v219, {H16}, v219
v_and_b32 v26, 1, v1
v_mul_u32_u24 v26, {P16 - U16}, v26
v_add_u32 v218, v218, v26
v_add_u32 v218, {U16}, v218
""")
    T(f"""
v_mov_b64 v[{vLINA}:{vLINA+1}], 0
v_mov_b64 v[{vLINA+2}:{vLINA+3}], 0
v_mov_b64 v[{vEOP}:{vEOP+1}], 0
v_mov_b64 v[{vEOP+2}:{vEOP+3}], 0
""")
    for k in range(8):
        T(f"v_mov_b64 v[{vACC+16+2*k}:{vACC+17+2*k}], 0")
    for k in range(4):
        T(f"v_mov_b64 v[{vBP+8+2*k}:{vBP+9+2*k}], 0")
    T(f"""
s_mov_b32 s32, 0xcccccccc
s_mov_b32 s33, 0xcccccccc
v_mov_b32 v26, 0x44444444
v_mov_b32 v27, 0xeeeeeeee
v_cndmask_b32 v{vIDX}, v26, v27, s[32:33]
v_mul_u32_u24 v{vLANE}, {2*PS}, v31
v_lshl_add_u32 v{vLANE}, v32, 4, v{vLANE}
v_add_u32 v{vLANE}, {E16}, v{vLANE}
""")
    T("s_waitcnt lgkmcnt(0)")
    for k, (ra, rb) in enumerate([(220, 221), (222, 223), (vaS[0], vaS[1])]):
        T(f"s_and_b32 s57, s{80+k}, 0xffff\ns_lshr_b32 s58, s{80+k}, 16\nv_add_u32 v{ra}, s57, v{vLANE}\nv_add_u32 v{rb}, s58, v{vLANE}")
    T(f"""
s_mov_b32 m0, 0
s_mov_b32 s60, s93
s_mov_b32 s58, -1
s_mov_b32 s59, s94
v_mov_b32 v{vD+1}, 0xff800000
v_mov_b64 v[{vD+2}:{vD+3}], 0
v_cndmask_b32 v{vD}, 0, v{vD+1}, s[58:59]
v_mov_b32 v{vD+1}, 0
v_mov_b64 v[{vL}:{vL+1}], 0
""")
    if DIAG == 3:
        stamp()
    T(f"s_waitcnt vmcnt({3 + TBLPF + OUTPF})")
    stamp()
    G = 48

    def gather(t):
        T(f"buffer_load_dwordx4 v[{G+4*t}:{G+4*t+3}], v{96+t}, s[28:31], 0 offen")
    for t in range(7):
        T(f"v_lshl_add_u32 v{96+t}, v{96+t}, 7, v114")
        if t < NFIRST:
            gather(t)
    T(f"s_waitcnt vmcnt({NFIRST})")
    T("v_dot2_f32_bf16 v236, v104, v108, 0")
    for i in range(4):
        T(f"v_lshlrev_b32 v{224+2*i}, 16, v{104+i}\nv_and_b32 v{225+2*i}, 0xffff0000, v{104+i}")
        if i < 3:
            T(f"v_dot2_f32_bf16 v236, v{105+i}, v{109+i}, v236")
    T("v_lshlrev_b32 v38, 16, v38")
    for i in range(4):
        T(f"v_cvt_pk_f16_f32 v{232+i}, v{224+2*i}, v{225+2*i}")
    T(f"""
v_add_f32_dpp v236, v236, v236 quad_perm:[1,0,3,2] row_mask:0xf bank_mask:0xf
ds_write_b128 v25, v[232:235] offset:{WOFF}
ds_write_b32 v24, v38
v_add_f32_dpp v236, v236, v236 quad_perm:[2,3,0,1] row_mask:0xf bank_mask:0xf
v_mul_f32 v38, s19, v38
s_nop 0
v_add_f32_dpp v236, v236, v236 row_half_mirror row_mask:0xf bank_mask:0xf
v_cvt_f16_f32 v38, v38
v_mul_f32 v236, {f32bits(HC):#x}, v236
ds_write_b16 v118, v38
v_cvt_f16_f32 v236, v236
ds_write_b16 v119, v236 offset:{U16}
s_waitcnt lgkmcnt(0)
s_barrier
""")
    stamp()
    rd = []
    for mt in range(4):
        for k in range(2):
            for hf in range(2):
                r = vW + (mt * 2 + k) * 4 + 2 * hf
                rd.append(f"ds_read_b64_tr_b16 v[{r}:{r+1}], v216 offset:{WOFF + (8*k+4*hf)*WRS + mt*32}")
    for mt in range(4):
        r = vBIAS + 4 * mt
        rd.append(f"ds_read_b128 v[{r}:{r+3}], v217 offset:{BS + 64*mt}")
    T(f"""
s_mov_b32 exec_lo, 0x000f000f
s_mov_b32 exec_hi, 0x000f000f
ds_read2_b32 v[{vLINA}:{vLINA+1}], v218 offset0:0 offset1:2
ds_read2_b32 v[{vLINA+2}:{vLINA+3}], v218 offset0:8 offset1:10
s_mov_b32 exec_lo, 0x00050005
s_mov_b32 exec_hi, 0x00050005
ds_read2_b32 v[{vEOP}:{vEOP+1}], v219 offset0:0 offset1:8
ds_read2_b32 v[{vEOP+2}:{vEOP+3}], v219 offset0:2 offset1:10
s_mov_b64 exec, -1
""")
    rest = list(range(NFIRST, 7))
    per = -(-len(rd) // max(1, len(rest)))
    for t in rest:
        gather(t)
        for x in rd[:per]:
            T(x)
        rd = rd[per:]
    for x in rd:
        T(x)

    def conv(t):
        g = G + 4 * t
        T(f"s_waitcnt vmcnt({6-t})")
        for i in range(4):
            T(f"v_lshlrev_b32 v{224+2*i}, 16, v{g+i}\nv_and_b32 v{225+2*i}, 0xffff0000, v{g+i}")
        for i in range(4):
            T(f"v_cvt_pk_f16_f32 v{g+i}, v{224+2*i}, v{225+2*i}")
        T(f"ds_write_b128 v30, v[{g}:{g+3}] offset:{t*4*FS}")
    conv(0)
    T("s_waitcnt lgkmcnt(14)")
    for tau in range(1, 4):
        for base in (vLINA, vEOP):
            for rho in range(4):
                T(f"v_mov_b32_dpp v{base+4*tau+rho}, v{base+rho} row_shr:{4*tau} row_mask:0xf bank_mask:0xf bound_ctrl:0")
    conv(1); conv(2); conv(3)
    if DIAG != 3:
        stamp()
    conv(4); conv(5)
    T("s_cmp_ge_u32 s53, 2\ns_cbranch_scc1 L_skip6")
    conv(6)
    o.extend(emit(flags()))
    T("L_skip6:")
    if PRIO:
        T("s_cmp_lt_u32 s52, 4\ns_cbranch_scc1 L_noprio\ns_setprio 1\nL_noprio:")
    T("s_waitcnt vmcnt(0) lgkmcnt(0)\ns_barrier")
    stamp(True)
    pre, sl, ep3, ep1 = main_parts()
    o += emit(pre)
    A(".p2align 6")
    A("L_loop:")
    o += emit(sl[0])
    o += emit(sl[1])
    A("L_slot2:")
    o += emit(sl[2])
    o += emit(sl[3])
    o += emit(ep3)
    T("L_tail:")
    stamp(True)
    SCR = WOFF
    T(f"""
ds_write_b64 v12, v[{vL}:{vN}] offset:{SCR}
s_waitcnt lgkmcnt(0)
s_barrier
""")
    stamp()
    T(f"""
ds_read_b64 v[16:17], v13 offset:{SCR}
ds_read_b32 v18, v15 offset:{EOK}
ds_read_b96 v[20:22], v19 offset:{WOK}
s_waitcnt lgkmcnt(2)
""")
    for d in ["quad_perm:[1,0,3,2]", "quad_perm:[2,3,0,1]", "row_half_mirror", "row_mirror"]:
        T(f"v_add_f32_dpp v16, v16, v16 {d} row_mask:0xf bank_mask:0xf\nv_add_f32_dpp v17, v17, v17 {d} row_mask:0xf bank_mask:0xf\ns_nop 0")
    T(f"""
v_mov_b32 v30, v16
v_mov_b32 v31, v17
s_nop 0
v_permlane16_swap_b32 v16, v30
v_permlane16_swap_b32 v17, v31
s_mov_b64 exec, s[58:59]
v_add_f32 v16, v16, v30
v_add_f32 v17, v17, v31
v_rcp_f32 v30, v16
v_med3_f32 v26, v16, v26, v27
v_mul_f32 v17, v17, v30
v_cmp_neq_f32 vcc, v26, v16
v_cvt_pk_bf16_f32 v24, v17, v17
v_cmp_class_f32 s[46:47], v17, v25
buffer_store_short v24, v14, s[48:51], 0 offen
s_waitcnt lgkmcnt(0)
v_and_b32 v18, v18, v20
v_and_b32 v21, v21, v22
v_and_b32 v18, v18, v21
v_cmp_eq_u32 s[44:45], 0, v18
@DIAG@
s_or_b64 s[46:47], s[46:47], vcc
s_or_b64 s[44:45], s[44:45], s[46:47]
s_and_b64 s[44:45], s[44:45], exec
s_cbranch_scc1 L_slow
L_end:
s_endpgm
L_ep1:
""")
    o += emit(ep1)
    T("s_branch L_tail")
    if PRIO:
        T("L_prio:\ns_setprio 0\ns_branch L_keep")
    T("L_pf_end:")
    T("""
L_slow:
s_mov_b64 exec, -1
v_lshlrev_b32 v2, 1, v1
v_add_u32 v3, 4096, v2
""")
    for d in range(64):
        T(f"global_load_ushort v{128+d}, v{2 if d < 32 else 3}, s[8:9] offset:{(d % 32) * 128}")
    T(f"""
global_load_ushort v100, v2, s[10:11]
global_load_ushort v101, v2, s[12:13]
global_load_ushort v102, v2, s[14:15]
s_mul_i32 s36, s52, 6656
s_add_u32 s36, s36, {E16}
v_lshlrev_b32 v4, 2, v1
v_add_u32 v4, s36, v4
s_waitcnt vmcnt(0)
""")
    for d in range(64):
        T(f"v_lshlrev_b32 v{128+d}, 16, v{128+d}")
    T("""
v_lshlrev_b32 v100, 16, v100
v_lshlrev_b32 v101, 16, v101
v_lshlrev_b32 v102, 16, v102
s_mov_b32 s37, 0
L_slow_b:
s_cmp_eq_u32 s37, 0
s_cselect_b32 s38, s44, s45
s_cmp_eq_u32 s38, 0
s_cbranch_scc1 L_slow_next
s_lshl_b32 s39, s2, 4
s_lshl_b32 s40, s52, 1
s_add_u32 s39, s39, s40
s_add_u32 s39, s39, s37
s_mul_i32 s40, s39, 104
v_lshlrev_b32 v5, 2, v1
buffer_load_dword v6, v5, s[24:27], s40 offen
s_mov_b32 s41, 0
v_mov_b32 v7, v4
s_waitcnt vmcnt(0)
L_slow_rows:
v_readlane_b32 s42, v6, s41
s_nop 3
s_lshl_b32 s42, s42, 7
buffer_load_ushort v8, v2, s[28:31], s42 offen
s_waitcnt vmcnt(0)
v_lshlrev_b32 v8, 16, v8
ds_write_b32 v7, v8
v_add_u32 v7, 256, v7
s_add_u32 s41, s41, 1
s_cmp_lt_u32 s41, 26
s_cbranch_scc1 L_slow_rows
v_mov_b32 v110, 0xff800000
v_mov_b32 v111, 0
v_mov_b32 v112, 0
s_mov_b32 s41, 0
s_waitcnt lgkmcnt(0)
L_slow_i:
s_lshl_b32 s42, s41, 8
v_add_u32 v7, s42, v4
ds_read_b32 v103, v7
s_add_u32 s43, s41, 1
L_slow_j:
s_lshl_b32 s42, s43, 8
v_add_u32 v7, s42, v4
ds_read_b32 v104, v7
s_waitcnt lgkmcnt(0)
v_mul_f32 v105, v103, v104
v_cvt_pk_bf16_f32 v105, v105, v105
v_lshlrev_b32 v105, 16, v105
v_mov_b32 v106, v100
v_mul_f32 v107, v105, v102
""")
    for g in range(8):
        for k in range(8):
            T(f"v_readlane_b32 s{64+k}, v105, {8*g+k}")
        for k in range(8):
            T(f"v_fma_f32 v106, s{64+k}, v{128+8*g+k}, v106")
    T("v_max_f32 v106, 0, v106\nv_mul_f32 v106, v106, v101\ns_nop 1")
    for dd in ["quad_perm:[1,0,3,2]", "quad_perm:[2,3,0,1]", "row_half_mirror", "row_mirror"]:
        T(f"v_add_f32_dpp v106, v106, v106 {dd} row_mask:0xf bank_mask:0xf\nv_add_f32_dpp v107, v107, v107 {dd} row_mask:0xf bank_mask:0xf\ns_nop 0")
    for sw in ("v_permlane16_swap_b32", "v_permlane32_swap_b32"):
        T(f"""
v_mov_b32 v108, v106
v_mov_b32 v109, v107
s_nop 1
{sw} v106, v108
{sw} v107, v109
s_nop 1
v_add_f32 v106, v106, v108
v_add_f32 v107, v107, v109
""")
    T(f"""
v_mul_f32 v106, {f32bits(LOG2E):#x}, v106
v_max_f32 v108, v110, v106
v_sub_f32 v109, v110, v108
v_sub_f32 v106, v106, v108
v_exp_f32 v109, v109
v_exp_f32 v106, v106
v_mov_b32 v110, v108
s_nop 0
v_mul_f32 v111, v111, v109
v_mul_f32 v112, v112, v109
v_add_f32 v111, v111, v106
v_fma_f32 v112, v106, v107, v112
s_add_u32 s43, s43, 1
s_cmp_lt_u32 s43, 26
s_cbranch_scc1 L_slow_j
s_add_u32 s41, s41, 1
s_cmp_lt_u32 s41, 25
s_cbranch_scc1 L_slow_i
v_rcp_f32 v111, v111
s_lshl_b32 s39, s39, 1
v_mov_b32 v7, s39
v_mul_f32 v112, v112, v111
v_cvt_pk_bf16_f32 v112, v112, v112
s_waitcnt vmcnt(0)
s_mov_b64 exec, 1
buffer_store_short v112, v7, s[48:51], 0 offen
s_mov_b64 exec, -1
L_slow_next:
s_add_u32 s37, s37, 1
s_cmp_lt_u32 s37, 2
s_cbranch_scc1 L_slow_b
s_endpgm
""")
    if DIAG:
        ns = min(stamp_n[0], 9) - (0 if stamp_n[0] < 9 else 1)
        d = [f"s_memtime s[{62+2*ns}:{63+2*ns}]", "s_memrealtime s[96:97]", "s_load_dwordx2 s[40:41], s[0:1], 80", "s_waitcnt lgkmcnt(0)",
             "s_mov_b64 s[100:101], exec", "s_mov_b64 exec, 1", "s_lshl_b32 s42, s2, 3", "s_add_u32 s42, s42, s52", "s_lshl_b32 s42, s42, 6", "v_mov_b32 v2, s42",
             "v_mov_b32 v3, s98", "global_store_dword v2, v3, s[40:41]", "v_mov_b32 v3, s96", "global_store_dword v2, v3, s[40:41] offset:4"]
        for k in range(1, ns + 1):
            d += [f"s_sub_u32 s42, s{62+2*k}, s62", "v_mov_b32 v3, s42", f"global_store_dword v2, v3, s[40:41] offset:{4+4*k}"]
        d += ["s_getreg_b32 s42, hwreg(HW_REG_HW_ID)", "v_mov_b32 v3, s42", "global_store_dword v2, v3, s[40:41] offset:56"]
        for k in range(rt_n[0]):
            d += [f"s_sub_u32 s42, s{32+2*k}, s98", "v_mov_b32 v3, s42", f"global_store_dword v2, v3, s[40:41] offset:{44+4*k}"]
        d += ["s_mov_b64 exec, s[100:101]"]
        assert 62 + 2 * ns + 1 < 80
        txt = "\n".join("  " + x for x in d)
    else:
        txt = ""
    o[:] = [txt if l.strip() == "@DIAG@" else l for l in o]
    rm = "  s_lshr_b32 s3, s2, 3\n  s_and_b32 s4, s2, 7\n  s_lshl_b32 s4, s4, 5\n  s_add_u32 s2, s3, s4" if REMAP else ""
    o[:] = [rm if l.strip() == "@REMAP@" else l for l in o]
    sl_ = "  s_and_b32 s57, s2, 15" if REMAP else "  s_lshr_b32 s57, s2, 3\n  s_and_b32 s57, s57, 15"
    o[:] = [sl_ if l.strip() == "@SLICE@" else l for l in o]
    A(".p2align 6")
    A(".type L_tbl,@object")
    A("L_tbl:")
    for k in range(0, len(tbl), 16):
        A("  .long " + ", ".join(f"{x:#x}" for x in tbl[k:k + 16]))
    A('.section .rodata,"a"')
    A(".p2align 6")
    A(f".amdhsa_kernel {KNAME}")
    A("""  .amdhsa_next_free_vgpr 256
  .amdhsa_next_free_sgpr 102
  .amdhsa_accum_offset 256
  .amdhsa_group_segment_fixed_size 0
  .amdhsa_kernarg_size 88
  .amdhsa_user_sgpr_count 2
  .amdhsa_user_sgpr_kernarg_segment_ptr 1
  .amdhsa_system_sgpr_workgroup_id_x 1
.end_amdhsa_kernel""")
    return "\n".join(o) + "\n"


if __name__ == "__main__":
    for a in list(sys.argv):
        if a.startswith("--order_file="):
            ORDER_FILE = a.split("=")[1]
            sys.argv.remove(a)
    for a in list(sys.argv):
        for key in ("prio", "nfirst", "outpf", "remap", "tblpf"):
            if a.startswith(f"--{key}="):
                globals()[key.upper()] = int(a.split("=")[1])
                sys.argv.remove(a)
    if "--diag" in sys.argv:
        DIAG = 1
        sys.argv.remove("--diag")
    if "--diag3" in sys.argv:
        DIAG = 3
        sys.argv.remove("--diag3")
    if "--diag2" in sys.argv:
        DIAG = 2
        sys.argv.remove("--diag2")
    out = sys.argv[1] if len(sys.argv) > 1 else "standalone__factorization_afm__recsys.s"
    open(out, "w").write(gen())
    print("wrote", out)
```
